```python
import torch

def _softmax(x, axis=-1):
    return torch.softmax(x, dim=axis)
def _gelu(x):
    return torch.nn.functional.gelu(x, approximate="tanh")
def _silu(x):
    return torch.nn.functional.silu(x)
def _sigmoid(x):
    return torch.sigmoid(x)
def _layernorm(x, axis=-1, eps=1e-5):
    m = x.mean(dim=axis, keepdim=True)
    v = x.var(dim=axis, keepdim=True, unbiased=False)
    return (x - m) / torch.sqrt(v + eps)
def _scatter_add(tgt, idx, src, axis=0):
    return tgt.clone().index_add_(axis, idx, src)
def _segment_sum(src, seg, n):
    out = torch.zeros((n,) + src.shape[1:], dtype=src.dtype)
    return out.index_add_(0, seg, src)
def _pad(x, pw):
    flat = tuple(v for pair in reversed(pw) for v in pair)
    return torch.nn.functional.pad(x, flat)

kernel_name = 'standalone__window_attn_swin__vision'

def setup_inputs():

    _w = (lambda a: (lambda t: t.to(torch.bfloat16) if t.is_floating_point() else t)(torch.as_tensor(a)))
    H = W = 512
    C = 192
    ws = 8
    nh = 4
    shift = ws // 2
    coords = torch.stack(torch.meshgrid(torch.arange(ws), torch.arange(ws), indexing='ij'), 0).reshape(2, -1)
    rel = coords[:, :, None] - coords[:, None, :]
    rel[0] += ws - 1
    rel[1] += ws - 1
    rel[0] *= 2 * ws - 1
    rp_idx = rel.sum(0).to(torch.int64)
    img_mask = torch.zeros((1, H, W, 1), dtype=float)
    cnt = 0
    for hs in (slice(0, H - ws), slice(H - ws, H - shift), slice(H - shift, H)):
        for vs in (slice(0, W - ws), slice(W - ws, W - shift), slice(W - shift, W)):
            img_mask[:, hs, vs, :] = cnt
            cnt += 1
    mw = img_mask.reshape(1, H // ws, ws, W // ws, ws, 1).permute(0, 1, 3, 2, 4, 5).reshape(-1, ws * ws)
    am = mw[:, :, None] - mw[:, None, :]
    attn_mask = torch.where(am != 0, -100.0, 0.0).to(float)
    return {
        "x": _w((lambda *s: torch.randn(*s, dtype=torch.bfloat16) * 1.6)(1, H, W, C)),
        "wqkv": _w((lambda *s: torch.randn(*s, dtype=torch.bfloat16) * 1.6)(C, 3 * C) * 0.02),
        "wo": _w((lambda *s: torch.randn(*s, dtype=torch.bfloat16) * 0.05)(C, C) * 0.02),
        "rpb": _w((lambda *s: torch.randn(*s, dtype=torch.bfloat16) * 0.2)((2 * ws - 1) * (2 * ws - 1), nh)),
        "rp_idx": _w(rp_idx),
        "attn_mask": _w(attn_mask),
    }

def reference(x, wqkv, wo, rpb, rp_idx, attn_mask):
    B, H, W, C = x.shape
    N = rp_idx.shape[0]
    ws = int(round(N ** 0.5))
    nh = rpb.shape[-1]
    hd = C // nh
    shift = ws // 2
    xs = torch.roll(x, (-shift, -shift), (1, 2))
    nWh = H // ws
    nWw = W // ws
    xw = (lambda x, *d: x.permute(*d))(xs.reshape(B, nWh, ws, nWw, ws, C), 0, 1, 3, 2, 4, 5).reshape(B * nWh * nWw, N, C)
    qkv = (lambda x, *d: x.permute(*d))(torch.einsum('wnc,cd->wnd', xw, wqkv).reshape(-1, N, 3, nh, hd), 2, 0, 3, 1, 4)
    q, k, v = qkv[0], qkv[1], qkv[2]
    attn = torch.einsum('whid,whjd->whij', q, k) * (hd ** -0.5)
    bias = (lambda x, *d: x.permute(*d))(rpb[rp_idx.reshape(-1)].reshape(N, N, nh), 2, 0, 1)
    attn = attn + bias[None, :, :, :]
    attn = (attn.reshape(B, nWh * nWw, nh, N, N) + attn_mask[None, :, None, :, :]).reshape(-1, nh, N, N)
    attn = _softmax(attn, axis=-1)
    out = (lambda x, *d: x.permute(*d))(torch.einsum('whij,whjd->whid', attn, v), 0, 2, 1, 3).reshape(-1, N, C)
    out = torch.einsum('wnc,cd->wnd', out, wo)
    out = (lambda x, *d: x.permute(*d))(out.reshape(B, nWh, nWw, ws, ws, C), 0, 1, 3, 2, 4, 5).reshape(B, H, W, C)
    return torch.roll(out, (shift, shift), (1, 2))
```

```python
import re

TRANS = ("v_exp_f32", "v_log_f32", "v_rcp_f32", "v_rsq_f32", "v_sqrt_f32", "v_sin_f32", "v_cos_f32")


def _regs(tok, pfx):
    tok = tok.strip()
    if tok.startswith("-"):
        tok = tok[1:]
    m = re.fullmatch(pfx + r"(\d+)", tok)
    if m:
        return [int(m.group(1))]
    m = re.fullmatch(pfx + r"\[(\d+):(\d+)\]", tok)
    if m:
        return list(range(int(m.group(1)), int(m.group(2)) + 1))
    return []


def sregs(tok):
    tok = tok.strip()
    if tok == "vcc":
        return ["vcc"]
    if tok == "m0":
        return ["m0"]
    if tok == "exec":
        return ["exec"]
    return _regs(tok, "s")


class Ins:
    __slots__ = ("text", "op", "kind", "rd", "wr", "srd", "swr", "A", "B", "C", "D", "passes", "nstates", "wide")

    def __init__(self, text):
        self.text = text
        t = text.split(";")[0].strip()
        self.rd, self.wr, self.srd, self.swr = set(), set(), set(), set()
        self.A = self.B = self.C = self.D = ()
        self.passes = 0
        self.nstates = 1
        self.wide = False
        if not t or t.endswith(":") or t.startswith("."):
            self.op, self.kind, self.nstates = t, "label", 0
            return
        parts = t.split(None, 1)
        op = self.op = parts[0]
        rest = parts[1] if len(parts) > 1 else ""
        ops = [o.strip().split()[0] if o.strip() else "" for o in rest.split(",")]
        V = lambda i: (_regs(ops[i], "v") + [256 + r for r in _regs(ops[i], "a")]) if i < len(ops) else []
        S = lambda i: sregs(ops[i]) if i < len(ops) else []
        if op.startswith("v_mfma"):
            self.kind = "mfma"
            self.passes = 8 if "32x32" in op else 4
            self.D, self.A, self.B, self.C = tuple(V(0)), tuple(V(1)), tuple(V(2)), tuple(V(3))
            self.wr = set(self.D)
            self.rd = set(self.A) | set(self.B) | set(self.C)
        elif op.startswith("ds_read"):
            self.kind = "dsr"
            self.wr, self.rd = set(V(0)), set(V(1))
        elif op.startswith("ds_write"):
            self.kind = "dsw"
            self.rd = set(V(0)) | set(V(1)) | set(V(2))
        elif op.startswith("buffer_load"):
            if re.search(r"\blds\b", rest):
                self.kind = "dma"
                self.rd = set(V(0))
                self.srd = set(S(1)) | set(S(2)) | {"m0"}
            else:
                self.kind = "vld"
                self.wr, self.rd = set(V(0)), set(V(1))
                self.srd = set(S(2)) | set(S(3))
        elif op.startswith("buffer_wbl2"):
            self.kind = "salu"
        elif op.startswith("global_load"):
            self.kind = "vld"
            self.wr, self.rd = set(V(0)), set(V(1))
            self.srd = set(S(2))
        elif op.startswith("buffer_store"):
            self.kind = "vst"
            self.rd = set(V(0)) | set(V(1))
            self.D = tuple(V(0))
            self.wide = op.endswith("x4") or op.endswith("x3")
            self.srd = set(S(2)) | set(S(3))
        elif op.startswith("global_store"):
            self.kind = "vst"
            self.rd = set(V(0)) | set(V(1))
            self.D = tuple(V(1))
            self.wide = op.endswith("x4") or op.endswith("x3")
            self.srd = set(S(2))
        elif op.startswith("v_permlane"):
            self.kind = "perm"
            self.rd = set(V(0)) | set(V(1))
            self.wr = set(self.rd)
        elif op.startswith("v_cmp"):
            self.kind = "valu"
            self.swr = set(S(0))
            for i in range(1, len(ops)):
                self.rd |= set(V(i))
                self.srd |= set(S(i))
        elif op.startswith("v_readfirstlane") or op.startswith("v_readlane"):
            self.kind = "rfl"
            self.swr = set(S(0))
            self.rd = set(V(1))
        elif op.startswith("v_"):
            self.kind = "trans" if op.replace("_e32", "").replace("_e64", "") in TRANS else "valu"
            self.wr = set(V(0))
            for i in range(1, len(ops)):
                self.rd |= set(V(i))
                self.srd |= set(S(i))
            if op.startswith("v_fmac"):
                self.rd |= self.wr
        elif op == "s_nop":
            self.kind = "nop"
            self.nstates = int(ops[0], 0) + 1
        elif op == "s_waitcnt":
            self.kind = "wait"
        elif op == "s_barrier":
            self.kind = "barrier"
        elif op.startswith("s_cbranch") or op in ("s_branch", "s_endpgm", "s_setpc_b64", "s_swappc_b64") or op.startswith("s_set_gpr"):
            self.kind = "branch"
        elif op.startswith("s_load") or op.startswith("s_mem"):
            self.kind = "smem"
            self.swr = set(S(0))
        elif op.startswith("s_"):
            self.kind = "salu"
            if not op.startswith("s_cmp") and not op.startswith("s_setprio"):
                self.swr = set(S(0))
                for i in range(1, len(ops)):
                    self.srd |= set(S(i))
            else:
                for i in range(len(ops)):
                    self.srd |= set(S(i))
        else:
            raise ValueError("unknown op: " + text)


DUP = []
ONE_DS = []
ISVALU = ("valu", "trans", "perm", "rfl")


def required(J, I):
    r = 0
    jk, ik = J.kind, I.kind
    if jk in ISVALU:
        if ik == "mfma" and J.wr & I.rd:
            r = max(r, 2)
        if ik == "perm" and J.wr & I.rd:
            r = max(r, 2)
        if ik == "rfl" and J.wr & I.rd:
            r = max(r, 1)
        if jk == "trans" and ik != "trans" and J.wr & (I.rd | I.wr):
            r = max(r, 1)
        if J.swr:
            if ik in ("vld", "vst", "dma") and J.swr & I.srd:
                r = max(r, 5)
            if ik in ISVALU and J.swr & I.srd:
                r = max(r, 2)
            if ik in ("salu", "branch") and (J.swr & I.srd or (ik == "branch" and "vcc" in J.swr)):
                r = max(r, 4)
    if jk == "mfma":
        big = J.passes == 8
        D = set(J.D)
        if ik == "mfma":
            if D & (set(I.A) | set(I.B)):
                r = max(r, 12 if big else 8)
            if D & set(I.C):
                if not (tuple(I.C) == tuple(J.D) and I.passes == J.passes):
                    r = max(r, 10 if big else 6)
            elif D & set(I.D):
                if not (tuple(I.D) == tuple(J.D) and I.passes == J.passes):
                    r = max(r, 10 if big else 6)
        elif D & (I.rd | I.wr):
            r = max(r, 12 if big else 8)
        if ik in ISVALU and set(J.C) & I.wr:
            r = max(r, 7 if big else 3)
    if jk == "vst" and J.wide and set(J.D) & I.wr:
        r = max(r, 2)
    if jk == "salu" and "m0" in J.swr and ik == "dma":
        r = max(r, 1)
    if jk == "salu" and "exec" in J.swr and ik in ("rfl", "perm", "mfma"):
        r = max(r, 0)
    return r


class Em:
    def __init__(self):
        self.out = []
        self.recent = []
        self.pos = 0
        self.q = []
        self.stats = {}
        self.marks = {}
        self.vtags, self.vmn = {}, 0
        self.mfma_time = True

    def state(self):
        return ([(p - self.pos, i) for p, i in self.recent], list(self.q))

    def set_state(self, st):
        self.recent = [(p + self.pos, i) for p, i in st[0]]
        self.q = list(st[1])

    def flush(self):
        self.recent = []
        self.q = []

    def _raw(self, ins):
        self.out.append(ins.text if ins.kind == "label" else "  " + ins.text)
        if ins.kind == "label":
            return
        self.stats[ins.kind] = self.stats.get(ins.kind, 0) + 1
        if ins.kind == "nop":
            self.stats["nopstates"] = self.stats.get("nopstates", 0) + ins.nstates
        self.recent.append((self.pos, ins))
        self.pos += ins.nstates
        self.recent = [(p, i) for p, i in self.recent if self.pos - p <= 24]

    def lgkm(self, n):
        if len(self.q) > n:
            n = min(n, 15)
            self._raw(Ins(f"s_waitcnt lgkmcnt({n})"))
            self.q = self.q[len(self.q) - n:] if n else []

    def __call__(self, text):
        if isinstance(text, (list, tuple)):
            for t in text:
                self(t)
            return
        if text == "@waitw":
            last = max([k for k, d in enumerate(self.q) if not d], default=-1)
            if last >= 0:
                self.lgkm(len(self.q) - 1 - last)
            return
        if text.startswith("@vtag"):
            self.vtags[text.split()[1]] = self.vmn
            return
        if text.startswith("@vwait"):
            self._raw(Ins(f"s_waitcnt vmcnt({self.vmn - self.vtags[text.split()[1]]})"))
            return
        if text.startswith("@st "):
            _, tag, st = text.split(None, 2)
            self(f"s_cbranch_vccnz L_st_{tag}")
            self(st)
            self(f"L_stb_{tag}:")
            return
        if text.startswith("@waitr"):
            r = int(text.split()[1])
            last = max([k for k, d in enumerate(self.q) if r in d], default=-1)
            if last >= 0:
                self.lgkm(len(self.q) - 1 - last)
            return
        if text.startswith("@mark"):
            self.marks[text.split()[1]] = self.state()
            return
        if DUP and not text.endswith(";dup") and any(re.search(p, text) for p in DUP):
            self(text + " ;dup")
        ins = Ins(text)
        if ins.kind == "label":
            self._raw(ins)
            return
        if ins.kind == "wait":
            m = re.search(r"lgkmcnt\((\d+)\)", text)
            if m:
                n = int(m.group(1))
                self.q = self.q[len(self.q) - n:] if n and len(self.q) > n else ([] if n == 0 else self.q)
            self._raw(ins)
            return
        touched = ins.rd | ins.wr
        last = -1
        for k, d in enumerate(self.q):
            if d & touched and not (DUP and ins.kind == "dsr" and k == len(self.q) - 1 and d == frozenset(ins.wr)):
                last = k
        if last >= 0:
            self.lgkm(len(self.q) - 1 - last)
        if ins.kind in ("dsr", "dsw") and len(self.q) >= 15:
            self.lgkm(12)
        need = 0
        for p, j in self.recent:
            req = required(j, ins)
            if req:
                between = self.pos - p - j.nstates
                need = max(need, req - between)
        while need > 0:
            k = min(need, 16)
            self._raw(Ins(f"s_nop {k-1}"))
            need -= k
        if ins.kind == "mfma" and self.mfma_time:
            for p, j in reversed(self.recent):
                if j.kind == "mfma":
                    self.pos = max(self.pos, p + j.passes - 1)
                    break
        self._raw(ins)
        if ins.kind in ("dma", "vld", "vst"):
            self.vmn += 1
        if ins.kind == "dsr":
            self.q.append(frozenset(ins.wr))
        elif ins.kind == "dsw":
            self.q.append(frozenset())
        self.stats["maxq"] = max(self.stats.get("maxq", 0), len(self.q))

    def text(self):
        return "\n".join(self.out) + "\n"


def vr(a, n=1):
    p = "v"
    if a >= 256:
        p, a = "a", a - 256
    return f"{p}{a}" if n == 1 else f"{p}[{a}:{a+n-1}]"


def sr(a, n=1):
    return f"s{a}" if n == 1 else f"s[{a}:{a+n-1}]"


class Sched:
    def __init__(self, backbone):
        self.bb = list(backbone)
        self.pre = []
        self.after = [[] for _ in self.bb]

    def put(self, idx, ins):
        tgt = self.pre if idx < 0 else self.after[min(idx, len(self.bb) - 1)]
        if isinstance(ins, (list, tuple)):
            tgt.extend(ins)
        else:
            tgt.append(ins)

    def spread(self, start, ins, per):
        i = start
        for k in range(0, len(ins), per):
            self.put(i, ins[k:k + per])
            i += 1
        return i

    def flat(self):
        out = list(self.pre)
        for b, a in zip(self.bb, self.after):
            out.append(b)
            out.extend(a)
        return out


def cost(text):
    op = text.split()[0]
    if op == "@st":
        return 8
    if text == "@mark w":
        return 4
    if op.startswith("@mark") or op.endswith(":") or op == "@vtag":
        return 0
    if op in TRANS:
        return 8
    if op.startswith("ds_write_b128"):
        return 12
    if op.startswith("ds_write") or op.startswith("buffer_"):
        return 8
    return 4


def pack(sched, start, fillers, budget, used=None, stop=None, over=False):
    i = start
    n = len(sched.bb) if stop is None else stop
    k = 0
    while k < len(fillers) and i < n:
        room = budget - sum(cost(x) for x in sched.after[i])
        while k < len(fillers) and (cost(fillers[k]) <= room or (over and room == budget)):
            if ONE_DS and fillers[k].startswith("ds_read") and any(x.startswith("ds_read") for x in sched.after[i]):
                break
            sched.put(i, fillers[k])
            room -= cost(fillers[k])
            k += 1
        i += 1
    return i - 1, fillers[k:]
```

```python
import sys, os, struct, math
sys.path.insert(0, os.path.dirname(os.path.abspath(__file__)))
from asmdsl import Em, Sched, vr, sr, cost, pack

NAME = "standalone__window_attn_swin__vision_kernel"

CC = {}
CFG = dict(
    a_first=1,
    mid_gap=30,
    a_budget=8,
    a_bud2=24, a_bud3=24, w01_start=0,
    fake16=0,
    a16=1, a_bud16=8, split01=10, mid_gap16=999, mid_abs=26, prio_a_s=3,
    prio_a=1,
    l2_pf=1,
    w_early=1,
    scale_early=0,
    warm_scale=0,
    conv_late=0,
    sum_mfma=0,
    b_drop=104,
    k_by_b=0,
    rot=15,
    b_wait=0,
    dup=0,
    st_switch=0,
    dma_pre=1,
    xmap=0,
    crot=0,
    rstag=0,
    st_pair=0,
    st_pat=0,
    tail_pf=14,
    q_first=0,
    start_piece=5,
    x1_first=0,
    a_first_loads=3,
    a_ahead=6,
    prio_b_hi=2,
    prio_b_lo=2,
    scale_in_loop=0,
    st_nt=1,
    ld_nt=1,
    empty=0,
    dbgst=0,
    spin_q=0,
    spin=0,
    wb_from=0,
    wb_sel=3,
    force_safe=0,
    stamp=0,
    stamp_n=8,
    no_store=0, no_dma=0, no_pw=0, no_exp=0, no_ow=0, no_valu=0, no_dsr=0, no_flag=0, no_swp=0, half_rd=0, no_mul=0, no_bias=0, dma_same=0, st_same=0, no_mfa=0, no_mfb=0,
    pair=1,
)

XB = [0, 24576, 65536]
BIAS = 49152
RINV = 64512
PB = 90112
OB = 122880
SPARE = 147456
FLAG = SPARE
STG_A = PB
STG_B = SPARE + 64
LDS_BYTES = 163840
SLOT0 = XB[2]
LDS_OOR = 0x40000
ROWB = 196608
XBYTES = 100663296
OOB = 0x10000000


def f32(x):
    return "0x%08x" % struct.unpack("<I", struct.pack("<f", x))[0]


LOG2E = 1.4426950408889634
QSCALE = (48 ** -0.5) * LOG2E
MASKV = -100.0 * LOG2E

S_WAVE, S_H = 3, 4
SRD_X, SRD_WQKV, SRD_WO, SRD_RPB, SRD_OUT = 8, 12, 16, 20, 24
S_WX, S_WY0, S_N, S_SAFE = 28, 29, 30, 31
S_XC, S_XN, S_XNN, S_SPEC = 32, 33, 34, 35
S_T = 36
S_K = 58

WBASE = 112


def mf32(d, a, b, c=None):
    return f"v_mfma_f32_32x32x16_bf16 {vr(d,16)}, {vr(a,4)}, {vr(b,4)}, {'0' if c is None else vr(c,16)}"


def mf16(d, a, b, c=None):
    return f"v_mfma_f32_16x16x32_bf16 {vr(d,4)}, {vr(a,4)}, {vr(b,4)}, {'0' if c is None else vr(c,4)}"


def cvt(d, a, b):
    return f"v_cvt_pk_bf16_f32 v{d}, v{a}, v{b}"


def srd(e, d, ptr, nbytes):
    e(f"s_mov_b32 s{d}, s{ptr}")
    e(f"s_and_b32 s{d+1}, s{ptr+1}, 0xffff")
    e(f"s_mov_b32 s{d+2}, {nbytes}")
    e(f"s_mov_b32 s{d+3}, 0x20000")


def emit_sw(e, dst, t, tmp):
    e(f"v_bfe_u32 v{dst}, v{t}, 1, 3")
    e(f"v_and_b32 v{tmp}, 1, v{t}")
    e(f"v_lshlrev_b32 v{tmp}, 2, v{tmp}")
    e(f"v_xor_b32 v{dst}, v{dst}, v{tmp}")


S_ST = 64


def stamp(c, k, cond=None):
    if not c["stamp"]:
        return []
    if c["stamp"] == 3 and k not in (0, 13):
        return []
    if c["stamp"] == 2:
        if k in (4, 5, 6, 7, 8, 9, 11) and cond is not None:
            return []
        if k == 3:
            cond = 14
        if k == 10:
            return ["s_cselect_b32 s94, 1, 0", f"s_cmp_eq_u32 s{S_N}, 2", f"s_cselect_b32 s{S_ST+k}, s60, s{S_ST+k}", "s_cmp_eq_u32 s94, 1"]
    out = ["s_memtime s[60:61]", "s_waitcnt lgkmcnt(0)"]
    if cond is None:
        out.append(f"s_mov_b32 s{S_ST+k}, s60")
    else:
        out += [f"s_cselect_b32 s94, 1, 0", f"s_cmp_eq_u32 s{S_N}, {cond}", f"s_cselect_b32 s{S_ST+k}, s60, s{S_ST+k}", "s_cmp_eq_u32 s94, 1"]
    return out


def pst(c, k):
    return stamp(c, k) if c["stamp"] == 2 else []


def diag(c):
    return c["stamp"] or c["dbgst"] or c["spin"]


def rotate_x(e):
    e(f"s_mov_b32 s{S_T}, s{S_XC}")
    e(f"s_mov_b32 s{S_XC}, s{S_XN}")
    e(f"s_mov_b32 s{S_XN}, s{S_XNN}")
    e(f"s_mov_b32 s{S_XNN}, s{S_T}")


def init_x(e):
    e(f"s_mov_b32 s{S_XC}, {XB[0]}")
    e(f"s_mov_b32 s{S_XN}, {XB[1]}")
    e(f"s_mov_b32 s{S_XNN}, {XB[2]}")


A_XA, A_BA, A_PA, A_RA, A_LMIN, A_LMAX, A_L0, A_L1 = range(8)
S_TILES = [None]


def tr_addr(e, dst, I, G, t):
    e(f"v_lshrrev_b32 v{t}, 2, v{I}")
    e(f"v_and_b32 v{t+1}, 1, v{G}")
    e(f"v_lshrrev_b32 v{t+2}, 3, v{I}")
    e(f"v_lshl_add_u32 v{t+1}, v{t+1}, 1, v{t+2}")
    e(f"v_lshl_add_u32 v{t}, v{G}, 3, v{t}")
    e(f"v_lshlrev_b32 v{t}, 7, v{t}")
    e(f"v_lshl_add_u32 v{t}, v{t+1}, 5, v{t}")
    e(f"v_and_b32 v{t+2}, 3, v{I}")
    e(f"v_lshl_add_u32 v{t}, v{t+2}, 3, v{t}")
    e(f"s_mul_i32 s{S_T}, s{S_H}, 3")
    for k in range(3):
        if k:
            e(f"s_add_u32 s{S_T}, s{S_T}, 1")
        e(f"s_and_b32 s{S_T+1}, s{S_T}, 3")
        e(f"s_lshl_b32 s{S_T+1}, s{S_T+1}, 5")
        e(f"s_lshr_b32 s{S_T+2}, s{S_T}, 2")
        e(f"s_lshl_b32 s{S_T+2}, s{S_T+2}, 13")
        e(f"s_add_u32 s{S_T+2}, s{S_T+2}, {SLOT0}")
        e(f"v_xor_b32 v{t+2}, s{S_T+1}, v{t}")
        e(f"v_add_u32 v{dst+k}, s{S_T+2}, v{t+2}")


def tr_piece(e, p, addr, dstfn, cur):
    slot = p % 4
    if slot // 2 != cur[0]:
        d = (slot // 2 - cur[0]) * 49152
        for dt in range(3):
            e(f"v_add_u32 v{addr+dt}, {d & 0xffffffff}, v{addr+dt}")
        cur[0] = slot // 2
    for k2 in range(2):
        for dt in range(3):
            for q in range(2):
                e(f"ds_read_b64_tr_b16 {vr(dstfn(dt, 2 * (p % 3) + k2) + 2 * q, 2)}, v{addr+dt} offset:{(slot & 1) * 24576 + k2 * 4096 + q * 512}")


V_WOFF = 79
S_WSRC, S_WDST = 62, 63
S_WXV, S_WXR, S_STEP = 5, 6, 7


def w_piece(p, groups=(0, 1)):
    out = []
    for k in groups:
        out.append(f"s_add_u32 s{S_T}, s{S_WSRC}, {(64 * (p % 3) + 32 * k) * 1152 + (p // 3) * 384}")
        for l in range(3):
            out.append(f"s_add_u32 m0, s{S_WDST}, {(p % 4) * 24576 + k * 4096 + l * (8192 - 128)}")
            out.append(f"buffer_load_dwordx4 v{V_WOFF}, {sr(SRD_WQKV,4)}, s{S_T} offen offset:{l * 128} lds")
    return out


def common_start(e, c):
    nt = " nt" if c["ld_nt"] else ""
    e(f"s_lshl_b32 s{S_T}, s{S_WXV}, 3")
    e(f"s_add_u32 s{S_T}, s{S_T}, 4")
    e("v_bfe_u32 v23, v0, 3, 4")
    emit_sw(e, 24, 23, 25)
    e("v_and_b32 v22, 7, v0")
    e("v_xor_b32 v24, v22, v24")
    e("v_and_b32 v21, 7, v23")
    e(f"v_add_u32 v25, s{S_T}, v21")
    e("v_and_b32 v25, 511, v25")
    e("v_mul_u32_u24 v25, 0x180, v25")
    e(f"v_lshl_add_u32 v{B_DV}, v24, 4, v25")
    e("v_and_b32 v24, 2, v23")
    e("v_lshrrev_b32 v25, 1, v23")
    e("v_and_b32 v25, 4, v25")
    e("v_xor3_b32 v24, v22, v24, v25" if False else "v_or_b32 v24, v24, v25")
    e("v_xor_b32 v24, v22, v24")
    e("v_mul_u32_u24 v25, 1152, v21")
    e(f"v_lshl_add_u32 v{V_WOFF}, v24, 4, v25")
    e(f"s_mul_i32 s{S_WSRC}, s{S_H}, {8 * 1152}")
    e(f"s_lshl_b32 s{S_WDST}, s{S_H}, 10")
    e(f"s_add_u32 s{S_WDST}, s{S_WDST}, {SLOT0}")
    init_x(e)
    e(f"s_mov_b32 s{S_N}, 0")
    e("s_waitcnt lgkmcnt(0)")
    srd(e, SRD_X, 48, XBYTES)
    srd(e, SRD_WQKV, 50, 192 * 576 * 2)


def weight_pf(e):
    e("s_lshr_b32 s44, s2, 3")
    e("s_lshl_b32 s44, s44, 2")
    e(f"s_add_u32 s44, s44, s{S_H}")
    e("s_cmp_ge_u32 s44, 73")
    e("s_cselect_b32 s45, 73, 0")
    e("s_sub_u32 s44, s44, s45")
    e("s_cmp_ge_u32 s44, 54")
    e("s_cselect_b64 s[40:41], s[52:53], s[50:51]")
    e("s_cselect_b32 s45, 54, 0")
    e(f"s_mov_b32 s42, {192 * 576 * 2}")
    e("s_cmp_eq_u32 s44, 72")
    e("s_cselect_b64 s[40:41], s[54:55], s[40:41]")
    e("s_cselect_b32 s45, 72, s45")
    e("s_cselect_b32 s42, 1800, s42")
    e("s_and_b32 s41, s41, 0xffff")
    e("s_mov_b32 s43, 0x20000")
    e("s_sub_u32 s44, s44, s45")
    e("s_lshl_b32 s44, s44, 12")
    e("v_and_b32 v26, 63, v0")
    e("v_lshlrev_b32 v26, 6, v26")
    e("buffer_load_dword v65, v26, s[40:43], s44 offen")


def a_tile_work(ti, first):
    R, kt, qt = S_TILES[ti]
    out = []
    if not CC["sum_mfma"]:
        L = (A_L0, A_L1)[qt]
        order = [0, 1, 2, 3, 8, 9, 10, 11, 4, 5, 6, 7, 12, 13, 14, 15]
        cvs, wrs = [], []
        for ap in range(2):
            d = R + 4 * ap
            cvs.append([cvt(d, d, d + 1), cvt(d + 1, d + 2, d + 3), cvt(d + 2, d + 8, d + 9), cvt(d + 3, d + 10, d + 11)])
            wrs.append(f"ds_write_b128 v{A_PA}, {vr(d,4)} offset:{(4 * kt + 2 * ap) * 1024 + qt * 512}")
        for i in range(0, 16, 2):
            out += [f"v_exp_f32 v{R+order[i]}, v{R+order[i]}", f"v_exp_f32 v{R+order[i+1]}, v{R+order[i+1]}"]
            if i >= 2:
                a = R + order[i - 2]
                if first and i == 2:
                    out += [f"v_add_f32 v{L}, v{a}, v{a+1}", cvs[0][0]]
                else:
                    out += [f"v_add_f32 v{L}, v{a}, v{L}", f"v_add_f32 v{L}, v{a+1}, v{L}"]
            if i == 8:
                out += cvs[0][1 if first else 0:] + [wrs[0]]
        out += cvs[1][:2] + [f"v_add_f32 v{L}, v{R+14}, v{L}", f"v_add_f32 v{L}, v{R+15}, v{L}"] + cvs[1][2:] + [wrs[1]]
        return out
    for ap in range(2):
        d = R + 4 * ap
        ex = [f"v_exp_f32 v{r}, v{r}" for r in (d, d + 1, d + 2, d + 3, d + 8, d + 9, d + 10, d + 11)]
        cv = [cvt(d, d, d + 1), cvt(d + 1, d + 2, d + 3), cvt(d + 2, d + 8, d + 9), cvt(d + 3, d + 10, d + 11)]
        wr = f"ds_write_b128 v{A_PA}, {vr(d,4)} offset:{(4 * kt + 2 * ap) * 1024 + qt * 512}"
        if ap == 0:
            out += ex
            hold = cv + [wr]
        else:
            out += ex[:1] + hold + ex[1:] + cv + [wr]
    return out


def a_finish():
    if CC["sum_mfma"]:
        return []
    return [f"v_permlane32_swap_b32 v{A_L0}, v{A_L1}",
            f"v_add_f32 v{A_L0}, v{A_L0}, v{A_L1}",
            f"v_rcp_f32 v{A_L1}, v{A_L0}",
            f"ds_write_b32 v{A_RA}, v{A_L1}",
            f"v_max3_f32 v{A_LMAX}, v{A_L0}, v{A_L1}, v{A_LMAX}"]


def flag_write(e, c, lmax, t0, t1):
    e(f"v_cmp_nge_f32 vcc, {f32(2.0 ** 40)}, v{lmax}")
    e(f"s_lshl_b32 s{S_T+3}, s{S_H}, 2")
    e(f"s_add_u32 s{S_T+3}, s{S_T+3}, {FLAG}")
    e(f"v_mov_b32 v{t0}, s{S_T+3}")
    e("s_cmp_lg_u64 vcc, 0")
    e(f"s_cselect_b32 s{S_T+2}, {0 if c['no_flag'] else 1}, {c['force_safe']}")
    e(f"v_mov_b32 v{t1}, s{S_T+2}")
    e(f"ds_write_b32 v{t0}, v{t1}")


def a_flag_and_restart(e, c, unxor, init):
    if not c["sum_mfma"]:
        flag_write(e, c, A_LMAX, A_L0, A_L1)
    e("s_waitcnt lgkmcnt(0)")
    e("s_barrier")
    if c["wb_from"]:
        e(["s_cmp_eq_u32 s44, 99", "s_cbranch_scc1 L_A_nowb2", "buffer_wbl2 sc1", "L_A_nowb2:"])
    e(f"s_cmp_lg_u32 s{S_SAFE}, 0")
    e("s_cbranch_scc1 L_end")
    e("s_barrier")
    e(f"v_mov_b32 v{A_L0}, {FLAG}")
    e(f"ds_read_b128 v[8:11], v{A_L0}")
    e("v_or3_b32 v8, v8, v9, v10")
    e("v_or_b32 v8, v8, v11")
    e(f"v_readfirstlane_b32 s{S_T}, v8")
    e(f"s_cmp_lg_u32 s{S_T}, 0")
    e("s_cbranch_scc1 L_A_redo")
    e("s_branch L_end" if diag(c) else "s_endpgm")
    e("L_A_redo:")
    e(f"s_mov_b32 s{S_SAFE}, 1")
    e(unxor)
    e(f"v_subrev_u32 v{A_XA}, {XB[16 % 3]}, v{A_XA}")
    init(e)
    e(a16_init2())
    e("s_barrier")
    for j in range(6):
        e(a16_xread(0, j))
    e("s_waitcnt lgkmcnt(0)")
    e("s_branch L_A_loop")


R1A, R1B, ACC16, U3 = 8, 24, 40, 96
QB = [48, 60, 72, 78]
KB = [54, 66, 84, 90]
XSLOT = [[R1A, R1A + 4, R1A + 8, R1A + 12, 84, 88],
         [R1B, R1B + 4, R1B + 8, R1B + 12, R1A, R1A + 4],
         [R1A + 8, R1A + 12, R1B, R1B + 4, R1B + 8, R1B + 12],
         [R1A, R1A + 4, R1A + 8, R1A + 12, R1B, R1B + 4]]
KORD = [[0, 2, 4, 1, 3, 5], [1, 3, 5, 0, 2, 4]]
FORD = [[0, 1, 2, 3, 4, 5], [0, 1, 2, 3, 4, 5], [3, 4, 5, 0, 1, 2], [0, 1, 2, 3, 4, 5]]
TS = [[U3, U3 + 4, U3 + 8, U3 + 12],
      [R1B + 12, 72, 76, 80],
      [R1B + 8, R1B, R1B + 4, ACC16],
      [R1A, R1A + 4, R1A + 8, R1A + 12]]
TORD = {3: [1, 2, 0, 3], 2: [3, 2, 1, 0], 1: [0, 1, 2, 3], 0: [0, 1, 2, 3]}
SORD = {3: [1, 2, 0, 3], 2: [3, 2, 1, 0], 1: [1, 0, 2, 3], 0: [0, 1, 2, 3]}
A_L2 = A_LMIN
LREG = {3: A_L0, 2: A_L1, 1: A_L1, 0: A_L2}


def bias_loc(d):
    return TS[d][0] if d >= 0 else TS[0][-d]


def a16_w(ft, ks):
    return WBASE + ks * 24 + ft * 4


def a16_xread(t, j):
    ks = KORD[t & 1][j]
    out = [f"v_xor_b32 v{A_XA}, 64, v{A_XA}"] if j == 3 else []
    return out + [f"ds_read_b128 {vr(XSLOT[t][j], 4)}, v{A_XA} offset:{t * 2048 + (ks >> 1) * 8192}"]


def a16_bias(d):
    return f"ds_read_b128 {vr(bias_loc(d), 4)}, v{A_BA} offset:{(2 * d + 6) * 128}"


def a16_smfma():
    out = []
    for qt in (3, 2, 1, 0):
        o = SORD[qt]
        for pair in (o[:2], o[2:]):
            out += [mf16(TS[qt][kt], KB[kt], QB[qt], bias_loc(qt - kt)) for kt in pair]
            out += [f"v_mfma_f32_16x16x16_bf16 {vr(TS[qt][kt],4)}, {vr(KB[kt]+4,2)}, {vr(QB[qt]+4,2)}, {vr(TS[qt][kt],4)}" for kt in pair]
    return out


def a16_col(qt):
    L = LREG[qt]
    regs = [TS[qt][kt] + r for kt in TORD[qt] for r in range(4)]
    out, done, cut = [], set(), None

    def adds(i):
        a = regs[i]
        if i == 0:
            return [f"v_add_f32 v{L}, v{a}, v{a+1}"]
        return [f"v_add_f32 v{L}, v{a}, v{L}", f"v_add_f32 v{L}, v{a+1}, v{L}"]

    def half(ks):
        a, b = TS[qt][2 * ks], TS[qt][2 * ks + 1]
        return [cvt(a, a, a + 1), cvt(a + 1, a + 2, a + 3), cvt(a + 2, b, b + 1), cvt(a + 3, b + 2, b + 3),
                f"ds_write_b128 v{A_PA}, {vr(a,4)} offset:{(2 * qt + ks) * 1024}"]

    for i in range(0, 18, 2):
        if i < 16:
            out += [f"v_exp_f32 v{regs[i]}, v{regs[i]}", f"v_exp_f32 v{regs[i+1]}, v{regs[i+1]}"]
        if i >= 2:
            out += adds(i - 2)
            if (i - 2) % 4 == 2:
                done.add(TORD[qt][(i - 2) // 4])
                for ks in range(2):
                    if {2 * ks, 2 * ks + 1} <= done and ("h", ks) not in done:
                        done.add(("h", ks))
                        out += half(ks)
                        if cut is None:
                            cut = len(out)
    if qt == 2:
        out += [f"v_permlane32_swap_b32 v{A_L0}, v{A_L1}", f"v_add_f32 v{A_L0}, v{A_L0}, v{A_L1}"]
    if qt == 0:
        out += [f"v_permlane32_swap_b32 v{A_L1}, v{A_L2}", f"v_add_f32 v{A_L1}, v{A_L1}, v{A_L2}",
                f"v_permlane16_swap_b32 v{A_L0}, v{A_L1}", f"v_add_f32 v{A_L0}, v{A_L0}, v{A_L1}",
                f"v_rcp_f32 v{A_L1}, v{A_L0}",
                f"ds_write_b32 v{A_RA}, v{A_L1}",
                f"v_max3_f32 v{A_LMAX}, v{A_L0}, v{A_L1}, v{A_LMAX}"]
    return out[:cut], out[cut:]


def a16_prologue(e, c):
    L = 8
    if c["q_first"]:
        for p in range(2):
            e(w_piece(p))
        weight_pf(e)
        e(w_piece(2))
    else:
        e(b_dma_x(c, S_N, 0, S_XC, False))
        if c["l2_pf"]:
            weight_pf(e)
        for p in range(c["w_early"]):
            e(w_piece(p))
    e(f"v_and_b32 v{L}, 63, v0")
    e(f"s_lshl_b32 s{S_T+1}, s{S_H}, 13")
    e(f"s_add_u32 s{S_T+1}, s{S_T+1}, {PB}")
    e(f"v_and_b32 v14, 15, v{L}")
    e(f"v_lshrrev_b32 v15, 4, v{L}")
    emit_sw(e, 11, L, 12)
    e(f"v_lshlrev_b32 v12, 4, v{L}")
    e(f"v_add_u32 v{A_PA}, s{S_T+1}, v12")
    e("v_xor_b32 v12, v15, v11")
    e("v_lshlrev_b32 v12, 4, v12")
    e(f"v_lshl_add_u32 v{A_XA}, v14, 7, v12")
    e(f"s_lshl_b32 s{S_T}, s{S_H}, 12")
    e(f"s_add_u32 s{S_T}, s{S_T}, {BIAS + 128}")
    e("v_and_b32 v9, 1, v15")
    e("v_lshrrev_b32 v10, 1, v15")
    e("v_lshlrev_b32 v13, 11, v9")
    e("v_lshl_add_u32 v13, v14, 4, v13")
    e("v_lshlrev_b32 v12, 7, v10")
    e("v_sub_u32 v13, v13, v12")
    e(f"v_add_u32 v{A_BA}, s{S_T}, v13")
    e("v_lshl_add_u32 v12, v9, 1, v10")
    e("v_sub_u32 v12, 3, v12")
    e("v_and_b32 v13, 7, v14")
    e("v_lshlrev_b32 v13, 4, v13")
    e("v_lshl_add_u32 v13, v12, 2, v13")
    e("v_lshrrev_b32 v12, 3, v14")
    e("v_lshl_add_u32 v13, v12, 11, v13")
    e(f"s_add_u32 s{S_T}, s{S_T}, {1920 - 128}")
    e(f"v_add_u32 v{A_RA}, s{S_T}, v13")
    tr_addr(e, 72, 14, 15, 16)
    e(f"s_mov_b32 s{S_K}, {f32(QSCALE)}")
    e(f"s_mov_b32 s{S_K+1}, s{S_K}")
    e("s_mov_b32 s40, 0xffff0000")
    e("s_mov_b32 s41, 0")
    if c["scale_early"]:
        e("s_getpc_b64 s[42:43]")
        e("L_A_pc:")
        e("s_add_u32 s42, s42, L_A_scale-L_A_pc")
        e("s_addc_u32 s43, s43, 0")
    if c["scale_in_loop"]:
        a16_init(e)
    cur = [0]
    rd = lambda p: tr_piece(e, p, 72, lambda dt, ks: a16_w(dt + 3 * (p // 3), ks), cur)
    if c["q_first"]:
        for p in range(3):
            e(f"s_waitcnt vmcnt({[13, 7, 0][p]}) lgkmcnt(0)")
            if p == 0:
                e(pst(c, 6))
            e("s_barrier")
            if p == 0:
                e(stamp(c, 1))
            rd(p)
    else:
        for p in range(c["w_early"], 3):
            e(w_piece(p))
        kb = c["k_by_b"]
        e("s_waitcnt vmcnt(12)")
        e(pst(c, 6))
        e("s_barrier")
        e(stamp(c, 1))
        rd(0)
        if not kb:
            e(w_piece(3))
        e(f"s_waitcnt vmcnt({6 if kb else 12}) lgkmcnt(0)")
        e("s_barrier")
        rd(1)
        if not kb:
            e(w_piece(4))
        if c["scale_early"]:
            e("s_mov_b32 s44, 48")
            e("s_swappc_b64 s[46:47], s[42:43]")
        e(f"s_waitcnt vmcnt({0 if kb else 12}) lgkmcnt(0)")
        e("s_barrier")
        rd(2)
        if not kb:
            e(w_piece(5))
    e(pst(c, 7))
    if not c["scale_in_loop"]:
        e("s_mov_b32 s44, 144")
        e("s_getpc_b64 s[46:47]")
        e("L_A_pc2:")
        e("s_add_u32 s46, s46, L_A_scale_done-L_A_pc2")
        e("s_addc_u32 s47, s47, 0")
        a16_scale_sub(e)
        e("L_A_scale_done:")
        e.flush()
        a16_init(e)
    e(pst(c, 5))
    for p in range(3, 6):
        e(f"s_waitcnt vmcnt({6 * (5 - p)}) lgkmcnt(0)")
        e("s_barrier")
        if p == 3:
            e(pst(c, 4))
        rd(p)
    for j in range(6):
        e(a16_xread(0, j))
    e(a16_init2())


def a16_scale_sub(e):
    e("L_A_scale:")
    e.flush()
    regs = [WBASE + j for j in range(12)] + [WBASE + 24 + j for j in range(12)]
    e("s_set_gpr_idx_on s41, gpr_idx(SRC1)")
    e("s_nop 0")
    for j, r in enumerate(regs):
        e(f"v_lshlrev_b32 v{24+2*j}, 16, v{r}")
        e(f"v_and_b32 v{25+2*j}, s40, v{r}")
    e("s_set_gpr_idx_off")
    e("s_nop 0")
    for j, r in enumerate(regs):
        e(f"v_pk_mul_f32 {vr(24+2*j,2)}, {vr(24+2*j,2)}, {sr(S_K,2)}")
    e("s_set_gpr_idx_on s41, gpr_idx(DST)")
    e("s_nop 0")
    for j, r in enumerate(regs):
        e(cvt(r, 24 + 2 * j, 25 + 2 * j))
    e("s_set_gpr_idx_off")
    e("s_add_u32 s41, s41, 48")
    e("s_cmp_lt_u32 s41, s44")
    e("s_waitcnt lgkmcnt(0)")
    e("s_cbranch_scc1 L_A_scale")
    e("s_setpc_b64 s[46:47]")


def a16_init(e):
    init_x(e)
    e(f"s_mov_b32 s{S_N}, 0")
    for r in (A_LMAX, A_L0, A_L1, A_L2):
        e(f"v_mov_b32 v{r}, 1.0")
    for r in list(range(R1B, R1B + 16, 2)) + list(range(U3, U3 + 16, 2)):
        e(f"v_mov_b64 {vr(r,2)}, 0")
    e(f"v_or_b32 v{A_PA}, {LDS_OOR}, v{A_PA}")


def a16_init2():
    return [f"v_mov_b64 {vr(r,2)}, 0" for r in range(72, 84, 2)]


def a16_prefetch_next():
    out = [f"s_sub_u32 s{S_T}, s{S_XN}, s{S_XC}",
           f"v_add_u32 v{A_XA}, s{S_T}, v{A_XA}"]
    for j in range(6):
        out += a16_xread(0, j)
    return out


def a16_split01(c):
    c3, c2, c1, c0 = (a16_col(q) for q in (3, 2, 1, 0))
    pre = c3[0] + c3[1] + a16_prefetch_next() + c2[0]
    parts = [(c2[1], 24), (c1[0], 29), (c1[1], 96), (c0[0] + c0[1], None)]
    k = c["split01"]
    post = []
    for w, stop in parts:
        n = min(k, len(w))
        pre += w[:n]
        k -= n
        if n < len(w):
            post.append((w[n:], stop))
    return pre, post


def a16_body(e, c):
    bb = []
    for t in range(4):
        for ci, ft in enumerate(FORD[t]):
            acc = ACC16 + 4 * (ci & 1)
            for j in range(6):
                bb.append(mf16(acc, a16_w(ft, KORD[t & 1][j]), XSLOT[t][j], None if j == 0 else acc))
    NQ = len(bb)
    bb += a16_smfma()
    NS = len(bb)
    s = Sched(bb)
    for t in range(4):
        for ci, ft in enumerate(FORD[t]):
            acc = ACC16 + 4 * (ci & 1)
            d = (QB[t] + 2 * ft) if ft < 3 else (KB[t] + 2 * (ft - 3))
            s.put(36 * t + 6 * ci + 5 + 3, [cvt(d, acc, acc + 1), cvt(d + 1, acc + 2, acc + 3)])
    rd = {(1, 0): 24, (1, 1): 24, (1, 2): 25, (1, 3): 29, (1, 4): 30, (1, 5): 31,
          (2, 0): 60, (2, 1): 60, (2, 2): 66, (2, 3): 67, (2, 4): 69, (2, 5): 69,
          (3, 0): 96, (3, 1): 96, (3, 2): 102, (3, 3): 103, (3, 4): 105, (3, 5): 105}
    for (t, j), pos in rd.items():
        s.put(pos, a16_xread(t, j))
    for t in (1, 2, 3):
        for j in (0, 2, 4):
            if not (t == 1 and j == 2):
                s.put(36 * t - 1 + j, f"@waitr {XSLOT[t][3 if (t, j) == (1, 0) else j + 1]}")
    s.put(-1, f"@waitr {XSLOT[0][5]}")
    bud = c["a_bud16"]
    pre01, post01 = a16_split01(c)
    i = 0
    for w, stop in post01:
        i, left = pack(s, i, w, bud, stop=stop, over=True)
        assert not left, left
    assert i + 10 < NQ, i
    end_idx = i + 3
    s.put(end_idx, ["@waitw"] + stamp(c, 8, c["stamp_n"] + 1) + ["s_barrier"] + stamp(c, 9, c["stamp_n"] + 1))
    i, left = pack(s, end_idx + 1, [a16_bias(d) for d in (0, -1, -2, -3)] +
         [f"v_and_b32 v{A_PA}, {LDS_OOR - 1}, v{A_PA}", f"s_lshl_b32 s{S_T}, s{S_N}, 2", f"s_add_u32 s{S_T}, s{S_T}, s{S_WY0}",
          f"s_cmp_eq_u32 s{S_T}, 63", f"s_cselect_b32 s{S_SPEC}, 1, s{S_SAFE}"], bud, stop=NQ - 1)
    assert not left
    i, left = pack(s, max(end_idx + 1, 112), [a16_bias(2), a16_bias(1)], bud, stop=NQ - 4)
    assert not left
    s.put(NQ - 6, a16_bias(3))
    s.put(NQ - 1, [f"@waitr {bias_loc(1)}", f"@waitr {bias_loc(-3)}"])
    BR = NQ + 3
    s.put(BR, stamp(c, 6, c["stamp_n"]) + [f"s_cmp_lg_u32 s{S_SPEC}, 0", "s_cbranch_scc1 L_A_special", "@mark special"])
    mid_idx = NQ + c["mid_abs"]
    if mid_idx == BR:
        mid_idx -= 1
    s.put(min(mid_idx, NQ - 2) - 1, f"s_setprio {c['prio_a_s']}")
    s.put(NS - 1, f"s_setprio {c['prio_a']}")
    c["_mid_after_br"] = mid_idx > BR
    s.put(mid_idx, stamp(c, 4, c["stamp_n"]) + ["s_barrier"] + stamp(c, 5, c["stamp_n"]))
    npf = len(a16_col(3)[0] + a16_col(3)[1])
    i, left = pack(s, NQ + 5, pre01[:npf], c["a_budget"], over=True)
    firstw = min(k for k in range(NQ, NS) if any(x.startswith("ds_write") for x in s.after[k])) if any(
        x.startswith("ds_write") for k in range(NQ, NS) for x in s.after[k]) else NS
    assert firstw > mid_idx, (firstw, mid_idx)
    left = left + pre01[npf:]
    e(s.flat())
    e(stamp(c, 7, c["stamp_n"]))
    e(left)
    e("L_A_join:")
    rotate_x(e)
    e(f"s_add_u32 s{S_N}, s{S_N}, 1")
    e(f"s_cmp_lt_u32 s{S_N}, 16")
    e("s_cbranch_scc1 L_A_loop")
    print(f"A16: end_idx {end_idx} mid_idx {mid_idx} firstw {firstw} exposed {sum(cost(x) for x in left)} cyc", file=sys.stderr)


def a16_special(e, c):
    e("L_A_special:")
    e.set_state(e.marks["special"])
    e(a16_smfma()[4:])
    e(f"s_setprio {c['prio_a']}")
    if c["_mid_after_br"]:
        e("s_barrier")
    e("s_nop 15")
    e(f"s_lshl_b32 s{S_T}, s{S_N}, 2")
    e(f"s_add_u32 s{S_T}, s{S_T}, s{S_WY0}")
    e(f"s_cmp_lg_u32 s{S_T}, 63")
    e("s_cbranch_scc1 L_A_noym")
    e(f"v_mbcnt_lo_u32_b32 v{A_L0}, -1, 0")
    e(f"v_mbcnt_hi_u32_b32 v{A_L0}, -1, v{A_L0}")
    e(f"v_lshrrev_b32 v{A_L1}, 2, v{A_L0}")
    e(f"v_xor_b32 v{A_L0}, v{A_L0}, v{A_L1}")
    e(f"v_and_b32 v{A_L0}, 4, v{A_L0}")
    e(f"s_cmp_eq_u32 s{S_WX}, 63")
    e(f"s_cselect_b32 s{S_T}, 4, 0")
    e(f"v_and_b32 v{A_L0}, s{S_T}, v{A_L0}")
    e(f"v_cmp_eq_u32 vcc, 0, v{A_L0}")
    e(f"v_mov_b32 v{A_L1}, {f32(MASKV)}")
    e(f"v_cndmask_b32 v{A_L0}, 0, v{A_L1}, vcc")
    for qt in range(4):
        for kt in range(4):
            if kt >> 1 != qt >> 1:
                for r in range(4):
                    e(f"v_add_f32 v{TS[qt][kt]+r}, v{A_L0}, v{TS[qt][kt]+r}")
    e("L_A_noym:")
    e(f"s_cmp_eq_u32 s{S_SAFE}, 0")
    e("s_cbranch_scc1 L_A_nomax")
    M = ACC16 + 4
    for qt in range(4):
        regs = [TS[qt][kt] + r for kt in range(4) for r in range(4)]
        e(f"v_max_f32 v{M}, v{regs[0]}, v{regs[1]}")
        for r in range(2, 16, 2):
            e(f"v_max3_f32 v{M}, v{regs[r]}, v{regs[r+1]}, v{M}")
        for sw in (32, 16):
            e(f"v_mov_b32 v{M+1}, v{M}")
            e(f"v_permlane{sw}_swap_b32 v{M}, v{M+1}")
            e(f"v_max_f32 v{M}, v{M}, v{M+1}")
        for r in regs:
            e(f"v_sub_f32 v{r}, v{r}, v{M}")
    e("L_A_nomax:")
    e(a16_split01(c)[0])
    e("s_waitcnt lgkmcnt(0)")
    e("s_nop 7")
    e("s_branch L_A_join")


def role_a16(e, c):
    e("L_roleA:")
    a16_prologue(e, c)
    if c["wb_from"]:
        e(f"s_lshr_b32 s{S_T}, s2, {c['wb_sel']}")
        e(f"s_or_b32 s{S_T}, s{S_T}, s{S_H}")
        e(f"s_cmp_eq_u32 s{S_T}, 0")
        e(f"s_cselect_b32 s44, {c['wb_from']}, 99")
    e(f"s_setprio {c['prio_a']}")
    e(stamp(c, 2))

    def body(e):
        e(stamp(c, 3, c["stamp_n"]))
        e(stamp(c, 10, 1))
        a16_body(e, c)

    e2 = Em()
    body(e2)
    st_back = e2.state()
    e.lgkm(0)
    e(".p2align 6")
    e("L_A_loop:")
    e.set_state(st_back)
    body(e)
    for w, _ in a16_split01(c)[1]:
        e(w)
    a_flag_and_restart(e, c, [f"v_xor_b32 v{A_XA}, 64, v{A_XA}"], a16_init)
    a16_special(e, c)


B_OA0, B_XA0, B_XA1, B_PRA, B_OW1, B_OW2, B_LMAX, B_DV, B_XP, B_SV1, B_SV2 = 0, 1, 2, 3, 4, 5, 6, 7, 8, 10, 11
RV = 12
RING = 16
AU = 48
VP = 64
WB2 = 88
S_ODD = 35
S_WOI = 58
S_WON = 45
S_STG = 44
S_SO = 40
NCH = [3, 3, 3, 3, 2, 2, 4, 4]


def slot(j, i):
    return RING + 4 * ((6 * j + i) % 8)


def b_wv(dt, ks):
    return WB2 + (ks * 3 + dt) * 4


def b_wo(et, ks):
    return WB2 + 72 + (ks * 4 + et) * 4


def b_vp(dt, ks):
    return VP + (dt * 2 + ks) * 4


def col_off(c, nreg, add, dst, tmp):
    return [f"s_add_u32 s{dst}, s{nreg}, {add & 0xffffffff}",
            f"s_mul_i32 s{dst}, s{dst}, s{S_STEP}",
            f"s_add_u32 s{dst}, s{dst}, s{S_WXR}",
            f"s_mul_hi_u32 s{tmp}, s{dst}, {(1 << 32) // 63 + 1}",
            f"s_mul_i32 s{tmp}, s{tmp}, 63",
            f"s_sub_u32 s{dst}, s{dst}, s{tmp}",
            f"s_mul_i32 s{dst}, s{dst}, 3072"]


def b_dma_x(c, nexpr_reg, add, base_sreg, valid_check):
    nt = ["", " nt", " sc1", " sc0 sc1", " sc1 nt", " sc0 sc1 nt", " sc0 nt"][c["ld_nt"]]
    out = []
    t = S_T
    if c["crot"]:
        out += col_off(c, nexpr_reg, add, t + 3, t)
    out.append(f"s_lshl_b32 s{t}, s{nexpr_reg}, 5")
    out.append(f"s_lshl_b32 s{t+1}, s{S_WY0}, 3")
    out.append(f"s_add_u32 s{t}, s{t}, s{t+1}")
    out.append(f"s_add_u32 s{t}, s{t}, s{S_H}")
    out.append(f"s_lshl_b32 s{t+2}, s{S_H}, 10")
    out.append(f"s_add_u32 s{t+2}, s{t+2}, s{base_sreg}")
    for yy in range(2):
        out.append(f"s_add_u32 s{t+1}, s{t}, {32 * add + 4 + 4 * yy}")
        out.append(f"s_and_b32 s{t+1}, s{t+1}, 511")
        out.append(f"s_mul_i32 s{t+1}, s{t+1}, {ROWB}")
        if c["crot"]:
            out.append(f"s_add_u32 s{t+1}, s{t+1}, s{t+3}")
        if valid_check:
            out.append(f"s_cmp_lt_u32 s{nexpr_reg}, {16 - add}")
            out.append(f"s_cselect_b32 s{t+1}, s{t+1}, {OOB}")
        for p in range(3):
            out.append(f"s_add_u32 m0, s{t+2}, {yy * 4096 + p * (8192 - 128)}")
            out.append(f"buffer_load_dwordx4 v{B_DV}, {sr(SRD_X,4)}, s{t+1} offen offset:{p * 128}{nt} lds")
    return out


S_D0 = 48


def b_dma_split(c):
    nt = ["", " nt", " sc1", " sc0 sc1", " sc1 nt", " sc0 sc1 nt", " sc0 nt"][c["ld_nt"]]
    t = S_T
    prep = [f"s_lshl_b32 s{t}, s{S_N}, 5", f"s_lshl_b32 s{t+1}, s{S_WY0}, 3", f"s_add_u32 s{t}, s{t}, s{t+1}",
            f"s_add_u32 s{t}, s{t}, s{S_H}", f"s_lshl_b32 s{S_D0+2}, s{S_H}, 10", f"s_add_u32 s{S_D0+2}, s{S_D0+2}, s{S_XNN}"]
    issue = []
    for yy in range(2):
        prep += [f"s_add_u32 s{t+1}, s{t}, {68 + 4 * yy}", f"s_and_b32 s{t+1}, s{t+1}, 511", f"s_mul_i32 s{t+1}, s{t+1}, {ROWB}",
                 f"s_cmp_lt_u32 s{S_N}, 14", f"s_cselect_b32 s{S_D0+yy}, s{t+1}, {OOB}"]
        for p in range(3):
            issue += [f"s_add_u32 m0, s{S_D0+2}, {yy * 4096 + p * (8192 - 128)}",
                      f"buffer_load_dwordx4 v{B_DV}, {sr(SRD_X,4)}, s{S_D0+yy} offen offset:{p * 128}{nt} lds"]
    return prep, issue


def b_store_offsets(add, S_N=S_N):
    t = S_T
    out = (col_off(CC, S_N, add + 63, t + 3, t) if CC["crot"] else []) + [f"s_lshl_b32 s{t}, s{S_N}, 5",
           f"s_lshl_b32 s{t+1}, s{S_WY0}, 3",
           f"s_add_u32 s{t}, s{t}, s{t+1}",
           f"s_lshr_b32 s{t+1}, s{S_ODD}, 8",
           f"s_sub_u32 s{t+2}, s{t}, s{t+1}",
           f"s_add_u32 s{t}, s{t}, s{t+1}"]
    for k in range(4):
        out.append(f"s_add_u32 s{t+1}, s{t if k < 2 else t+2}, {(32 * add + 4 + 2 * k) & 0xffffffff}")
        out.append(f"s_and_b32 s{t+1}, s{t+1}, 511")
        out.append(f"s_mul_i32 s{S_SO+k}, s{t+1}, {ROWB}")
        if CC["crot"]:
            out.append(f"s_add_u32 s{S_SO+k}, s{S_SO+k}, s{t+3}")
    return out


def b_prologue(e, c):
    L, I, G = 16, 17, 18
    SW = 19
    e(pst(c, 4))
    e(f"v_and_b32 v{L}, 63, v0")
    if c["warm_scale"]:
        e("s_mov_b32 s41, 0")
        e("s_mov_b32 s44, 0")
        e("s_getpc_b64 s[42:43]")
        e("L_B_pc:")
        e("s_sub_u32 s42, s42, L_B_pc-L_A_scale")
        e("s_subb_u32 s43, s43, 0")
    if c["warm_scale"]:
        e("s_swappc_b64 s[46:47], s[42:43]")
    srd(e, SRD_WO, 52, 192 * 192 * 2)
    srd(e, SRD_RPB, 54, 225 * 4 * 2)
    srd(e, SRD_OUT, 56, XBYTES)
    e(f"v_and_b32 v{I}, 15, v{L}")
    e(f"v_lshrrev_b32 v{G}, 4, v{L}")
    emit_sw(e, SW, I, 20)
    e(f"v_xor_b32 v20, v{G}, v{SW}")
    e("v_lshlrev_b32 v20, 4, v20")
    e(f"v_lshl_add_u32 v{B_XP}, v{I}, 7, v20")
    e(f"v_lshlrev_b32 v22, 4, v{I}")
    e(f"v_lshl_add_u32 v23, v{G}, 10, v22")
    e(f"v_add_u32 v{B_OA0}, {OB}, v23")
    e(f"s_lshl_b32 s{S_T}, s{S_H}, 13")
    e(f"s_add_u32 s{S_T}, s{S_T}, {PB}")
    e(f"v_lshlrev_b32 v24, 4, v{L}")
    e(f"v_add_u32 v{B_PRA}, s{S_T}, v24")
    e(f"s_lshl_b32 s{S_T}, s{S_H}, 12")
    e(f"v_add_u32 v{B_OW1}, s{S_T}, v{B_OA0}")
    e(f"s_and_b32 s{S_ODD}, s{S_H}, 1")
    e(f"s_lshl_b32 s{S_T}, s{S_ODD}, 9")
    e(f"s_lshl_b32 s{S_ODD}, s{S_ODD}, 10")
    e(f"v_add_u32 v{B_OA0}, s{S_T}, v{B_OA0}")
    e(f"s_lshl_b32 s{S_T}, s{S_H}, 11")
    e(f"s_add_u32 s{S_T}, s{S_T}, {OB + 16384}")
    e(f"v_lshrrev_b32 v23, 1, v{G}")
    e("v_lshl_add_u32 v23, v23, 10, v22")
    e(f"v_and_b32 v24, 1, v{G}")
    e("v_lshl_add_u32 v23, v24, 3, v23")
    e(f"v_add_u32 v{B_OW2}, s{S_T}, v23")
    e(f"s_lshl_b32 s{S_T}, s{S_H}, 12")
    e(f"s_add_u32 s{S_T}, s{S_T}, {BIAS + 1920}")
    e(f"v_lshrrev_b32 v23, 3, v{I}")
    e("v_mul_u32_u24 v23, 1920, v23")
    e("v_add3_u32 v23, v23, v22, 0")
    e(f"v_add_u32 v{B_LMAX}, s{S_T}, v23")
    e(f"s_lshl_b32 s{S_T}, s{S_WXV}, 3")
    e(f"s_add_u32 s{S_T}, s{S_T}, 4")
    e(f"v_and_b32 v23, 7, v{I}")
    e(f"v_add_u32 v23, s{S_T}, v23")
    e("v_and_b32 v23, 511, v23")
    e("v_mul_u32_u24 v23, 0x180, v23")
    e(f"v_lshrrev_b32 v24, 3, v{I}")
    e(f"v_mul_u32_u24 v24, {ROWB}, v24")
    e("v_add_u32 v23, v23, v24")
    e(f"v_lshl_add_u32 v24, v{G}, 4, v23")
    e(f"s_lshr_b32 s{S_T}, s{S_H}, 1")
    e(f"s_lshl_b32 s{S_T}, s{S_T}, 6")
    e(f"s_add_u32 s{S_T+1}, s{S_T}, 256")
    e(f"v_add_u32 v{B_SV2}, s{S_T+1}, v24")
    e(f"s_lshr_b32 s{S_T+1}, s{S_ODD}, 3")
    e(f"s_add_u32 s{S_T}, s{S_T}, s{S_T+1}")
    e(f"v_add_u32 v{B_SV1}, s{S_T}, v24")
    tr_addr(e, 53, I, G, 20)
    e(f"s_lshl_b32 s{S_T}, s{S_H}, 6")
    e(f"v_add_u32 v20, s{S_T}, v16")
    for k in range(4):
        E = 28 + k
        e(f"v_add_u32 v{E}, {256 * k}, v20")
        if k == 3:
            e(f"v_min_u32 v{E}, 959, v{E}")
        e(f"v_lshrrev_b32 v21, 5, v{E}")
        e("v_cmp_lt_u32 vcc, 14, v21")
        e("v_mul_u32_u24 v21, 15, v21")
        e(f"v_bfe_u32 v22, v{E}, 2, 3")
        e(f"v_cndmask_b32 v{32+k}, 0, 1, vcc")
        e("v_add3_u32 v21, v21, v22, 7")
        e(f"v_mul_u32_u24 v22, 229, v{32+k}")
        e("v_sub_u32 v21, v21, v22")
        e(f"v_and_b32 v23, 3, v{E}")
        e("v_sub_u32 v21, v21, v23")
        e(f"v_lshlrev_b32 v{68+k}, 3, v21")
    wo = b_wo_loads(56)
    e(wo[0])
    e(pst(c, 5))
    if not c["q_first"]:
        e("s_setprio 3")
    for k in range(4):
        e(f"buffer_load_dwordx2 {vr(36+2*k,2)}, v{68+k}, {sr(SRD_RPB,4)}, 0 offen")
    e("s_setprio 0")
    if c["q_first"]:
        e(b_dma_x(c, S_N, 0, S_XC, False))
    if c["k_by_b"]:
        e(w_piece(3))
    e(stamp(c, 1))
    if c["k_by_b"]:
        e(["s_barrier"] * 2 + w_piece(4) + ["s_barrier"] + w_piece(5))
    else:
        e(["s_barrier"] * 3)
    if c["q_first"]:
        e(w_piece(3))
    e(pst(c, 6))
    def conv(vm):
        e(f"s_mov_b32 s{S_T}, {f32(LOG2E)}")
        e("s_mov_b32 s40, 0xffff0000")
        e(f"s_cmp_eq_u32 s{S_WX}, 63")
        e(f"s_cselect_b32 s{S_T+2}, {f32(MASKV)}, 0")
        e(f"s_waitcnt vmcnt({vm})")
        for k in range(4):
            E = 28 + k
            e(f"v_bfe_u32 v20, v{E}, 4, 1")
            e(f"v_cmp_ne_u32 vcc, v20, v{32+k}")
            e(f"v_mov_b32 v21, s{S_T+2}")
            e(f"v_lshlrev_b32 v22, 2, v{E}")
            e("v_cndmask_b32 v21, 0, v21, vcc")
            e(f"v_lshl_add_u32 v22, v{32+k}, 7, v22")
            for h in range(4):
                src = 36 + 2 * k + (h >> 1)
                t = 24 + h
                if h & 1:
                    e(f"v_and_b32 v{t}, s40, v{src}")
                else:
                    e(f"v_lshlrev_b32 v{t}, 16, v{src}")
                e(f"v_fma_f32 v{t}, v{t}, s{S_T}, v21")
                e(f"ds_write_b32 v22, v{t} offset:{BIAS + h * 4096}")

    if not c["conv_late"]:
        conv(12 if c["q_first"] else 18 if c["k_by_b"] else 0)
    if c["q_first"]:
        e(w_piece(4) + w_piece(5))
    e(b_dma_x(c, S_N, 1, S_XN, False))
    e(stamp(c, 2))
    if c["q_first"] or c["k_by_b"]:
        for p in range(3, 6):
            e(f"s_waitcnt vmcnt({6 * (6 - p)})")
            e("s_barrier")
    else:
        e(["s_barrier"] * 3)
    e(w_piece(6))
    if c["conv_late"]:
        conv(12)
    for p in range(7, 9):
        e(w_piece(p))
    e(wo[1])
    e("s_waitcnt vmcnt(12)")
    e.lgkm(0)
    e(pst(c, 7))
    e("s_barrier")
    cur = [0]
    for p in range(6, 9):
        tr_piece(e, p, 53, b_wv, cur)
    e(wo[2])
    e(f"s_lshl_b32 s{S_STG}, s{S_H}, 12")
    e(f"s_add_u32 s{S_STG}, s{S_STG}, {SPARE}")
    e(f"s_mov_b32 s{S_WON}, 1")
    if c["tail_pf"]:
        e("s_getpc_b64 s[46:47]")
        e("L_B_pc3:")
        e(f"s_bitcmp1_b32 s{S_H}, 0")
        e(f"s_mov_b32 s{S_T}, L_A_join-L_B_pc3")
        e(f"s_cselect_b32 s{S_T}, L_B_tail-L_B_pc3, s{S_T}")
        e(f"s_lshl_b32 s{S_T+1}, s{S_H}, 13")
        e(f"s_add_u32 s{S_T+1}, s{S_T+1}, {PB}")
        e(f"s_sub_u32 s{S_T}, s{S_T}, s{S_T+1}")
        e(f"s_ashr_i32 s{S_T+1}, s{S_T}, 31")
        e(f"s_add_u32 s46, s46, s{S_T}")
        e(f"s_addc_u32 s47, s47, s{S_T+1}")
    e("s_mov_b32 s59, 0")
    e(pst(c, 9))


def b_wo_loads(T):
    a = [f"s_lshr_b32 s{S_T}, s{S_H}, 1",
         f"s_lshl_b32 s{S_T}, s{S_T}, 6",
         f"s_lshr_b32 s{S_T+1}, s{S_ODD}, 3",
         f"s_add_u32 s{S_T}, s{S_T}, s{S_T+1}",
         f"s_sub_u32 s{S_T+1}, 192, s{S_T+1}",
         "v_lshrrev_b32 v20, 3, v16",
         "v_mul_u32_u24 v20, 0x180, v20",
         "v_and_b32 v21, 7, v16",
         "v_lshl_add_u32 v20, v21, 4, v20",
         "v_lshrrev_b32 v21, 2, v21",
         f"v_mad_u32_u24 v20, v21, s{S_T+1}, v20",
         f"v_add_u32 v{T}, s{S_T}, v20"]
    l = []
    for pc in range(6):
        for j in range(4):
            if j % 2 == 0:
                row = 48 * pc + 8 * j if pc < 4 else 96 * (pc - 4) + 32 + 24 * j
                l.append(f"s_mov_b32 s{S_T}, {row * 384}")
            l.append(f"buffer_load_dwordx4 {vr(b_wo(j, pc), 4)}, v{T}, {sr(SRD_WO,4)}, s{S_T} offen offset:{(j & 1) * 3072}")
    return a, l[:18], l[18:]


def b_wo_block(e, c):
    T = AU
    L, I, G = T, T + 1, T + 2
    e(f"v_mbcnt_lo_u32_b32 v{L}, -1, 0")
    e(f"v_mbcnt_hi_u32_b32 v{L}, -1, v{L}")
    e(f"v_and_b32 v{I}, 15, v{L}")
    e(f"v_lshrrev_b32 v{G}, 4, v{L}")
    e(f"v_lshlrev_b32 v{T+3}, 4, v{L}")
    e(f"v_add_u32 v{T+3}, s{S_STG}, v{T+3}")
    e(f"v_lshrrev_b32 v{T+4}, 2, v{I}")
    e(f"v_and_b32 v{T+5}, 3, v{I}")
    e(f"v_lshl_add_u32 v{T+4}, v{G}, 2, v{T+4}")
    e(f"v_lshlrev_b32 v{T+4}, 7, v{T+4}")
    e(f"v_lshl_add_u32 v{T+4}, v{T+5}, 4, v{T+4}")
    e(f"v_add_u32 v{T+6}, s{S_STG}, v{T+4}")
    e(f"v_lshl_add_u32 v{T+8}, v{G}, 9, v{T+6}")
    for pc in range(6):
        for j in range(4):
            e(f"ds_write_b128 v{T+3}, {vr(b_wo(j, pc), 4)} offset:{j * 1024}")
        for et in range(4):
            for q in range(2):
                ad = T + (6 if pc < 4 else 8)
                e(f"ds_read_b64_tr_b16 {vr(b_wo(et, pc) + 2 * q, 2)}, v{ad} offset:{q * (2048 if pc < 4 else 512) + (et >> 1) * 64 + (et & 1) * 8}")
    e("s_waitcnt lgkmcnt(0)")
    e(pst(c, 11))


def b_fread(j, ks):
    if j < 4:
        return f"ds_read_b128 {vr(slot(j, ks), 4)}, v{(B_XA0, B_XA1)[ks & 1]} offset:{j * 2048 + (ks >> 1) * 8192}"
    return f"ds_read_b128 {vr(slot(j, ks), 4)}, v{B_OA0} offset:{ks * 4096 + (j - 4) * 256}"


def b_xaddr():
    return [f"v_add_u32 v{B_XA0}, s{S_XC}, v{B_XP}",
            f"v_xor_b32 v{B_XA1}, 64, v{B_XA0}"]


CH0 = [sum(NCH[:j]) for j in range(9)]


def b_unit(j, ch):
    return AU + 4 * ((CH0[j] + ch) % 4)


def b_mfma(j):
    out = []
    for ch in range(NCH[j]):
        u = b_unit(j, ch)
        for ks in range(6):
            a, b = (slot(j, ks), b_wv(ch, ks)) if j < 4 else (b_wo(ch, ks), slot(j, ks))
            out.append(mf16(u, a, b, None if ks == 0 else u))
    return out


ALT = {}


def b_cvt(c, j, ch, final=False):
    u = b_unit(j, ch)
    if j < 4:
        d = b_vp(ch, j >> 1) + 2 * (j & 1)
        return [cvt(d, u, u + 1), cvt(d + 1, u + 2, u + 3)]
    if ch % 2 == 0:
        return [cvt(u, u, u + 1), cvt(u + 1, u + 2, u + 3)]
    nt = ["", " nt", " sc1", " sc0 sc1", " sc1 nt", " sc0 sc1 nt", " sc0 nt"][c["st_nt"]]
    a = u - 4
    st = f"buffer_store_dwordx4 {vr(a,4)}, v{B_SV1 if ch < 2 else B_SV2}, {sr(SRD_OUT,4)}, s{S_SO+j-4} offen"
    if c["st_switch"] and not final:
        tag = f"{j}_{ch}"
        ALT[tag] = st + nt
        return [cvt(a + 2, u, u + 1), cvt(a + 3, u + 2, u + 3), f"@st {tag} {st}"]
    return [cvt(a + 2, u, u + 1), cvt(a + 3, u + 2, u + 3), st + nt]


PF = [RING, RING + 8, RING + 16, RING + 24]
OU = [[AU, AU + 4, AU + 12], [AU + 8, RING, RING + 4], [RING + 8, RING + 12, AU + 4], [AU, AU + 12, RING + 16]]


def b_p_reads(ts):
    return [f"ds_read_b128 {vr(PF[t] + 4 * ks, 4)}, v{B_PRA} offset:{(2 * t + ks) * 1024}" for t in ts for ks in range(2)]


def b_rv_read():
    return f"ds_read_b128 {vr(RV,4)}, v{B_LMAX}"


def b_norm(t):
    u0, u1, u2 = OU[t]
    mul = lambda u: [f"v_mul_f32 v{u+r}, v{RV+t}, v{u+r}" for r in range(4)]
    return (mul(u0) + [cvt(u0, u0, u0 + 1), cvt(u0 + 1, u0 + 2, u0 + 3)] +
            mul(u1) + [cvt(u0 + 2, u1, u1 + 1), cvt(u0 + 3, u1 + 2, u1 + 3),
                       f"ds_write_b128 v{B_OW1}, {vr(u0,4)} offset:{t * 256}"] +
            mul(u2) + [cvt(u2, u2, u2 + 1), cvt(u2 + 1, u2 + 2, u2 + 3),
                       f"ds_write_b64 v{B_OW2}, {vr(u2,2)} offset:{t * 256}"])


def b_pv_phase(e, c):
    bb = [mf16(OU[t][dt], b_vp(dt, ks), PF[t] + 4 * ks, None if ks == 0 else OU[t][dt])
          for t in range(4) for dt in range(3) for ks in range(2)]
    s = Sched(bb)
    s.spread(2, b_cvt(c, 7, 3), 2)
    s.spread(4, b_norm(0), 2)
    s.spread(14, b_norm(1), 2)
    e(s.flat())
    e(b_xaddr() + [b_fread(0, 0), b_fread(0, 1), b_fread(0, 5)])
    e(b_norm(2))
    e([b_fread(0, 2), b_fread(0, 3)])
    e(b_norm(3))
    e(b_fread(0, 4))


def b_tiles(e, c, post_end, extra, vp_hook):
    bb, off = [], []
    for j in range(8):
        off.append(len(bb))
        bb += b_mfma(j)
    off.append(len(bb))
    s = Sched(bb)
    for j in range(8):
        o, lastc = off[j], off[j + 1] - 6
        if j < 7:
            if j == 5:
                s.put(o + 3, f"v_subrev_u32 v{B_OA0}, s{S_ODD}, v{B_OA0}")
            s.put(o + 4 + c["b_wait"], b_fread(j + 1, 0))
            s.put(o + 5, b_fread(j + 1, 1))
            for i in range(2, 6):
                s.put(lastc + i - 2, b_fread(j + 1, i))
            if j == 6:
                s.put(lastc + 4, f"v_add_u32 v{B_OA0}, s{S_ODD}, v{B_OA0}")
            s.put(off[j + 1] - 1, f"@waitr {slot(j + 1, 1)}")
            if c["b_wait"] == 0:
                s.put(off[j + 1] + 1, f"@waitr {slot(j + 1, 3)}")
                s.put(off[j + 1] + 3, f"@waitr {slot(j + 1, 5)}")
            else:
                for i in range(2, 6):
                    s.put(off[j + 1] + i - 1, f"@waitr {slot(j + 1, i)}")
        if j == 3:
            s.put(off[4] - 1, stamp(c, 6, c["stamp_n"] + 1) + list(vp_hook))
    s.put(c["b_drop"], "s_setprio 0")
    o = off[7]
    s.put(o + 5, post_end)
    pr = b_p_reads([0, 1, 2, 3])
    s.put(o + 6, pr[0]); s.put(o + 7, pr[1]); s.put(o + 11, b_rv_read())
    for i in range(6):
        s.put(o + 18 + i, pr[2 + i])
    for j in range(8):
        for ch in range(NCH[j]):
            idx = off[j] + 6 * ch + 5 + 3
            if idx < len(bb):
                cv = b_cvt(c, j, ch)
                i, left = pack(s, idx, cv, 8, stop=min(idx + 7, len(bb)))
                s.put(i, left)
    i, left = pack(s, 0, list(extra), 12 if c["crot"] else 8, stop=71)
    assert not left, left
    e(s.flat())


def role_b(e, c):
    e("L_roleB:")
    e(f"s_mov_b32 s{S_WOI}, 1")
    e(f"s_mov_b32 s{S_WON}, 1")
    b_prologue(e, c)
    e("L_B_enter:")
    e("s_mov_b64 vcc, 0")
    e(b_xaddr() + [b_fread(0, ks) for ks in range(6)])
    e("s_waitcnt lgkmcnt(0)")
    e(f"s_setprio {c['prio_b_lo']}")
    e("s_barrier")
    if c["spin"]:
        e("s_memtime s[78:79]")
        e("s_waitcnt lgkmcnt(0)")
    e(pst(c, 8))
    if c["dma_pre"]:
        e(b_dma_x(c, S_N, 2, S_XNN, False))
    e("s_branch L_B_vtiles")

    def body(e):
        if c["stamp"] == 1:
            e(stamp(c, 3, c["stamp_n"]))
            e(stamp(c, 10, 1))
        b_pv_phase(e, c)
        e(stamp(c, 11, c["stamp_n"]))
        e("@waitw")
        e(f"s_setprio {c['prio_b_lo']}")
        e(f"s_cmp_eq_u32 s{S_N}, s{S_WON}")
        e("s_cbranch_scc1 L_B_special")
        e("s_waitcnt vmcnt(6)")
        dma = b_dma_x(c, 59 if c["dma_same"] else S_N, 2, S_XNN, True)
        if c["dma_pre"]:
            e("L_B_dma:")
            e(b_dma_split(c)[1])
            dma = []
            e(stamp(c, 4, c["stamp_n"]))
            e(f"s_cmp_eq_u32 s{S_N}, s{S_WOI}")
            e("s_barrier")
            e("s_cbranch_scc1 L_B_wo")
        else:
            e(stamp(c, 4, c["stamp_n"]))
            e("s_barrier")
        e("L_B_vtiles:")
        e(stamp(c, 5, c["stamp_n"]))
        extra = dma + b_store_offsets(-1, 59 if c["st_same"] else S_N) + [
            f"s_mov_b32 s{S_T}, s{S_XC}", f"s_mov_b32 s{S_XC}, s{S_XN}", f"s_mov_b32 s{S_XN}, s{S_XNN}",
            f"s_mov_b32 s{S_XNN}, s{S_T}", f"s_add_u32 s{S_N}, s{S_N}, 1"]
        if c["dma_pre"]:
            extra += b_dma_split(c)[0]
        if c["st_switch"]:
            extra += [f"s_cmp_gt_u32 s{S_N}, {c['st_switch']}", "s_cselect_b64 vcc, -1, 0"]
        if c["tail_pf"]:
            extra = [f"s_cmp_lg_u32 s{S_N}, {c['tail_pf']}\n  s_cbranch_scc1 L_B_nopf\n  global_load_dword v9, v{B_PRA}, s[46:47]\nL_B_nopf:"] + extra
        post = stamp(c, 8, c["stamp_n"] + 1) + [f"s_setprio {c['prio_b_hi']}", "s_barrier"] + stamp(c, 9, c["stamp_n"] + 1)
        hook = [f"s_cmp_eq_u32 s{S_N}, 1", "s_cbranch_scc1 L_B_first_done", "@mark vp", "L_B_ptiles:"]
        b_tiles(e, c, post, extra, hook)
        e(f"s_cmp_lt_u32 s{S_N}, 17")
        e("s_cbranch_scc1 L_B_loop")

    e2 = Em()
    body(e2)
    st_back = e2.state()
    e(".p2align 6")
    e("L_B_loop:")
    e.set_state(st_back)
    body(e)
    e("L_B_tail:")
    e(b_cvt(c, 7, 3, True))
    e("s_branch L_end" if diag(c) else "s_endpgm")
    for tag, st in ALT.items():
        e(f"L_st_{tag}:")
        e(st)
        e(f"s_branch L_stb_{tag}")

    e("L_B_first_done:")
    e.set_state(e.marks["vp"])
    e(b_cvt(c, 3, 2))
    e(f"s_mov_b32 s{S_SO+3}, {OOB}")
    e(f"s_mov_b32 s{S_SO+2}, {OOB}")
    e("s_waitcnt lgkmcnt(0)")
    e(f"s_setprio {c['prio_b_hi']}")
    e("s_barrier")
    e(b_p_reads([0]) + [b_rv_read()] + b_p_reads([1, 2, 3]))
    assert e.state()[1] == st_back[1], (e.state()[1], st_back[1])
    e("s_branch L_B_loop")

    e("L_B_special:")
    e.flush()
    e(f"s_cmp_eq_u32 s{S_N}, 16")
    e("s_cbranch_scc1 L_B_last")
    e(f"s_mov_b32 s{S_WON}, 16")
    e("s_waitcnt vmcnt(1)")
    if c["dma_pre"]:
        e("s_branch L_B_dma")
        e("L_B_wo:")
        e(f"s_mov_b32 s{S_WOI}, 99")
    else:
        e(f"s_cmp_lg_u32 s{S_SAFE}, 0")
        e("s_barrier")
        e("s_cbranch_scc1 L_B_vtiles")
    b_wo_block(e, c)
    e("s_branch L_B_vtiles")
    e("L_B_last:")
    e(stamp(c, 12))
    e(f"v_mov_b32 v{B_XA1}, {FLAG}")
    e("s_waitcnt lgkmcnt(0)")
    e("s_barrier")
    e(f"ds_read_b128 {vr(AU,4)}, v{B_XA1}")
    e([b_fread(4, ks) for ks in range(6)])
    e(b_store_offsets(-1))
    e(f"s_mov_b32 s{S_N}, 17")
    e(f"v_or3_b32 v{AU}, v{AU}, v{AU+1}, v{AU+2}")
    e(f"v_or_b32 v{AU}, v{AU}, v{AU+3}")
    e(f"v_readfirstlane_b32 s{S_T}, v{AU}")
    e(f"s_andn2_b32 s{S_T}, s{S_T}, s{S_SAFE}")
    e(f"s_cmp_eq_u32 s{S_T}, 0")
    e("s_waitcnt lgkmcnt(0)")
    e("s_cbranch_scc1 L_B_ptiles")
    e("L_B_restart:")
    e(f"s_mov_b32 s{S_SAFE}, 1")
    e(f"s_mov_b32 s{S_WON}, 1")
    e("s_waitcnt vmcnt(0) lgkmcnt(0)")
    init_x(e)
    e(f"s_mov_b32 s{S_N}, 0")
    e(b_dma_x(c, S_N, 0, S_XC, False))
    e(b_dma_x(c, S_N, 1, S_XN, False))
    e("s_waitcnt vmcnt(0)")
    e("s_barrier")
    e("s_barrier")
    e("s_branch L_B_enter")


HEADER = """; Swin shifted-window attention, fused: QKV projection + softmax(QK^T*scale + bias + mask) V + output projection.
; @launch grid=(256,1,1) block=(512,1,1) lds={lds}
.amdgcn_target "amdgcn-amd-amdhsa--gfx950"
.text
.globl {name}
.p2align 8
.type {name},@function
{name}:
"""

FOOTER = """.section .rodata,"a"
.p2align 6
.amdhsa_kernel {name}
  .amdhsa_next_free_vgpr 256
  .amdhsa_next_free_sgpr 100
  .amdhsa_accum_offset 256
  .amdhsa_group_segment_fixed_size 0
  .amdhsa_kernarg_size 72
  .amdhsa_user_sgpr_count 2
  .amdhsa_user_sgpr_kernarg_segment_ptr 1
  .amdhsa_system_sgpr_workgroup_id_x 1
.end_amdhsa_kernel
"""


def generate(**kw):
    c = dict(CFG)
    c.update(kw)
    CC.update(c)
    import asmdsl
    asmdsl.DUP.clear()
    e = Em()
    e(f"s_cmp_ge_u32 s2, {0 if c['empty'] else 256}")
    e("s_cbranch_scc1 L_end")
    if c["stamp"]:
        for k in range(16):
            e(f"s_mov_b32 s{S_ST+k}, 0")
        e(stamp(c, 0))
        e("s_memrealtime s[96:97]")
        e("s_load_dwordx2 s[98:99], s[0:1], 64")
    if c["spin"]:
        e("s_memtime s[64:65]")
        e("s_memrealtime s[66:67]")
    if c["dbgst"]:
        e("s_memtime s[64:65]")
        e("s_memrealtime s[66:67]")
        e("s_load_dwordx2 s[68:69], s[0:1], 56")
    e("s_load_dwordx4 s[48:51], s[0:1], 0")
    e("s_load_dwordx4 s[52:55], s[0:1], 16")
    e("s_load_dwordx2 s[56:57], s[0:1], 48")
    if c["l2_pf"]:
        e("s_getpc_b64 s[46:47]")
        e("s_bfe_u32 s44, s2, 0x20003")
        e("s_lshl_b32 s44, s44, 6")
        e("v_subrev_u32 v2, s44, v0")
        e("v_cmp_gt_u32 vcc, 64, v2")
        e("v_lshlrev_b32 v2, 6, v0")
        e(f"v_min_u32 v2, L_end-{NAME}-256, v2")
        e("s_cbranch_vccz L_nocpf")
        e("global_load_dword v64, v2, s[46:47]")
        e("L_nocpf:")
    e("v_lshrrev_b32 v1, 6, v0")
    e(f"v_readfirstlane_b32 s{S_WAVE}, v1")
    if c["xmap"] == 1:
        e(f"s_and_b32 s{S_WX}, s2, 7")
        e(f"s_lshl_b32 s{S_WX}, s{S_WX}, 3")
        e(f"s_bfe_u32 s{S_T}, s2, 0x30003")
        e(f"s_or_b32 s{S_WX}, s{S_WX}, s{S_T}")
    elif c["xmap"] == 2:
        e(f"s_and_b32 s{S_WX}, s2, 1")
        e(f"s_lshl_b32 s{S_WX}, s{S_WX}, 5")
        e(f"s_lshr_b32 s{S_T}, s2, 3")
        e(f"s_or_b32 s{S_WX}, s{S_WX}, s{S_T}")
    else:
        e(f"s_and_b32 s{S_WX}, s2, 63")
    e(f"s_bfe_u32 s{S_WY0}, s2, 0x20001" if c["xmap"] == 2 else f"s_lshr_b32 s{S_WY0}, s2, 6")
    if c["crot"]:
        e(f"s_cmp_eq_u32 s{S_WX}, 63")
        e(f"s_cselect_b32 s{S_WXV}, 63, 0")
        e(f"s_cselect_b32 s{S_WXR}, 0, s{S_WX}")
        e(f"s_cselect_b32 s{S_STEP}, 0, {c['crot']}")
    else:
        e(f"s_mov_b32 s{S_WXV}, s{S_WX}")
    if c["rstag"]:
        e(f"s_mul_i32 s{S_T}, s{S_WX}, {c['rstag']}")
        e(f"s_and_b32 s{S_T}, s{S_T}, 15")
        e(f"s_lshl_b32 s{S_T}, s{S_T}, 2")
        e(f"s_add_u32 s{S_WY0}, s{S_WY0}, s{S_T}")
    elif c["rot"]:
        e(f"s_add_u32 s{S_WY0}, s{S_WY0}, {4 * c['rot']}")
    e(f"s_mov_b32 s{S_SAFE}, 0")
    e(f"s_and_b32 s{S_H}, s{S_WAVE}, 3")
    common_start(e, c)
    e(f"s_cmp_ge_u32 s{S_WAVE}, 4")
    e("s_cbranch_scc1 L_roleB" if c["a_first"] else "s_cbranch_scc0 L_roleB")
    if c["dup"] & 2:
        asmdsl.DUP.append(r"ds_write_b128 v2,")
    role_a16(e, c)
    e.flush()
    asmdsl.DUP.clear()
    if c["dup"] & 1:
        asmdsl.DUP.append(r"ds_read_b128 .*, v[12] offset")
    if c["dup"] & 2:
        asmdsl.DUP.append(r"ds_read_b128 .*, v3 offset")
    role_b(e, c)
    e("L_end:")
    if c["spin"]:
        e("s_cmp_ge_u32 s2, 256")
        e("s_cbranch_scc1 L_end4")
        e(f"s_cmp_lt_u32 s{S_WAVE}, 4")
        e("s_cbranch_scc1 L_end4")
        e("s_waitcnt vmcnt(0)")
        e("s_memtime s[72:73]")
        e("s_memrealtime s[74:75]")
        e("s_waitcnt lgkmcnt(0)")
        e("s_sub_u32 s72, s72, s64")
        e("s_sub_u32 s74, s74, s66")
        if c["spin_q"] == 0:
            e(f"s_mov_b32 s76, {c['spin']}")
        elif c["spin_q"] == 1:
            e("s_sub_u32 s76, s72, 100000")
            e("s_lshr_b32 s76, s76, 3")
            e(f"s_add_u32 s76, s76, {c['spin']}")
        elif c["spin_q"] == 2:
            e("s_sub_u32 s76, s78, s64")
            e("s_lshr_b32 s76, s76, 1")
            e(f"s_add_u32 s76, s76, {c['spin']}")
        e("L_spin:")
        e("s_sleep 4")
        e("s_memrealtime s[74:75]")
        e("s_waitcnt lgkmcnt(0)")
        e("s_sub_u32 s74, s74, s66")
        e("s_cmp_lt_u32 s74, s76")
        e("s_cbranch_scc1 L_spin")
        e("L_end4:")
    if c["dbgst"]:
        e("s_lshr_b32 s70, s2, 3")
        e("s_cmp_lg_u32 s70, 8")
        e("s_cbranch_scc1 L_end3")
        e(f"s_cmp_lg_u32 s{S_WAVE}, 4")
        e("s_cbranch_scc1 L_end3")
        e("s_waitcnt vmcnt(0)")
        e("s_memtime s[72:73]")
        e("s_memrealtime s[74:75]")
        e("s_waitcnt lgkmcnt(0)")
        e("s_sub_u32 s72, s72, s64")
        e("s_sub_u32 s74, s74, s66")
        e("s_and_b32 s70, s2, 7")
        e("s_lshl_b32 s70, s70, 3")
        e("v_mov_b32 v0, s70")
        e("v_mov_b32 v2, s72")
        e("v_mov_b32 v3, s74")
        e("s_mov_b64 exec, 1")
        e("global_store_dwordx2 v0, v[2:3], s[68:69]")
        e("L_end3:")
    if c["stamp"]:
        e("s_cmp_ge_u32 s2, 256")
        e("s_cbranch_scc1 L_end2")
        e("s_waitcnt vmcnt(0)")
        e(stamp(c, 13))
        e("s_memrealtime s[60:61]")
        e("s_waitcnt lgkmcnt(0)")
        e(f"s_mov_b32 s{S_ST+14}, s96")
        e(f"s_mov_b32 s{S_ST+15}, s60")
        e("s_lshl_b32 s60, s2, 3")
        e(f"s_add_u32 s60, s60, s{S_WAVE}")
        e("s_lshl_b32 s60, s60, 6")
        e("v_mov_b32 v0, s60")
        e("s_mov_b64 exec, 1")
        for k in range(16):
            e(f"v_mov_b32 v1, s{S_ST+k}")
            e(f"global_store_dword v0, v1, s[98:99] offset:{4*k}")
        e("L_end2:")
    e("s_endpgm")
    lines = e.text().split("\n")
    def drop(l):
        if not inloop[0]: return False
        if c["no_store"] and "buffer_store" in l: return True
        if c["no_pw"] and "ds_write_b128" in l and inA[0]: return True
        if c["no_ow"] and ("ds_write_b128" in l or "ds_write_b64" in l) and not inA[0]: return True
        if c["no_exp"] and "v_exp" in l: return True
        if c["no_swp"] and "v_permlane16" in l: return True
        if c["no_mul"] and "v_mul_f32" in l: return True
        if c["no_valu"] and any(x in l for x in ("v_exp", "v_add_f32", "v_mul_f32", "v_cvt_pk")): return True
        if c["no_dsr"] and "ds_read_b128" in l: return True
        if c["no_dma"] and "lds" in l and "buffer_load" in l: return True
        if c["no_mfa"] and "v_mfma" in l and inA[0]: return True
        if c["no_mfb"] and "v_mfma" in l and not inA[0]: return True
        return False
    inA, inloop = [True], [False]
    keep = []
    for l in lines:
        if l.startswith("L_roleB"): inA[0] = False
        if l.startswith("L_roleA"): inA[0] = True
        if l.startswith("L_A_loop") or l.startswith("L_B_loop"): inloop[0] = True
        if l.startswith("L_A_join") or l.startswith("L_B_first_done"): inloop[0] = False
        keep.append(("  s_nop 1" if "v_exp" in l else "  s_nop 0") if drop(l) else l)
    return HEADER.format(name=NAME, lds=LDS_BYTES) + "\n".join(keep) + FOOTER.format(name=NAME), e.stats


if __name__ == "__main__":
    out = sys.argv[1] if len(sys.argv) > 1 else "standalone__window_attn_swin__vision.s"
    kw = {}
    for a in sys.argv[2:]:
        k, v = a.split("=")
        kw[k] = int(v)
    txt, stats = generate(**kw)
    open(out, "w").write(txt)
    print(out, len(txt), stats)
```

```python
import sys, os
sys.path.insert(0, os.path.dirname(os.path.abspath(__file__)))
from asmdsl import Em, Sched, vr, sr, cost, pack
from gen import (NAME, f32, LOG2E, QSCALE, MASKV, ROWB, XBYTES, OOB, LDS_OOR, mf16, cvt, srd, emit_sw, stamp, pst, diag,
                 S_WAVE, S_H, SRD_X, SRD_WQKV, SRD_WO, SRD_RPB, SRD_OUT, S_WX, S_WY0, S_N, S_SAFE, S_XC, S_XN, S_XNN, S_SPEC,
                 S_T, S_K, S_ST, LDS_BYTES, weight_pf, FOOTER)

CFG = dict(rot=15, st_nt=1, ld_nt=1, stamp=0, stamp_n=8, dbgst=0, spin=0, force_safe=0, no_flag=0, bud=8, bar_at=6,
           no_store=0, no_dma=0, dma0=36, dstep=16, spin_q=0, hop=0, wo_early=0, gst=0, seg=0, k_sync=53, q_sync=53, v_sync=29, wo_v=20, q_d0=12, v_d1=44, conv_pos=1, sumv=0, sparse1=1, epi=1, q_bar=1, x1_span=150, x0_early=0, snake=1, kmaj=0, pzig=0, s2=0, wo_s=20, dummy=1, even=1, p2e=1, t0r=19, ord0=3, cpf=1, hop_pos=1, rq=-1, rqs=2)
XB = [0, 40960, 65536]
BIAS = 24576
SLOT0 = 40960
PSLOT = [0, 1, 2, 3, 4, 2, 0, 1, 2, 2, 3, 4]
S_WSRC2, S_RET = 58, 92
S_HK = 59
OB0, OB1 = 90112, 114688
FLAG = 139264
S_ODD, S_OAD, S_OWD, S_SO, S_D0 = 5, 6, 7, 40, 48
S_WSRC, S_WDST = 62, 63

XA0, XA1, BA, OA, OW1, OW2, DV, SV1, SV2, LMAX, XP, TMP, RV = 0, 1, 176, 3, 4, 5, 6, 7, 8, 9, 10, 11, 12
OA2, LMIN = 2, 11
VP = 16
QB, KB = [40, 52, 64, 70], [46, 58, 76, 82]
BI = 88
G = [116 + 4 * i for i in range(17)]
WQ, WK, WV, WO, ONES = 184, 256, 256 + 72, 256 + 144, 256 + 240
TS = [G[12:16], G[8:12], G[4:8], G[0:4]]
LS = G[7]
OU = {3: [G[1], G[3], G[5]], 2: [G[0], G[2], G[9]], 1: [G[4], G[6], G[11]], 0: [G[8], G[10], G[13]]}
TU = [[76, 80], [80, 76], [G[8], G[9]], [G[14], G[15]]]
PU = [40, 44, 48, 52]
PCH = [2, 2, 4, 4]
V_WOFF = 183
NT = ["", " nt", " sc1", " sc0 sc1", " sc1 nt", " sc0 sc1 nt", " sc0 nt"]


_pst, _stamp = pst, stamp


def rqp(c, k):
    return ["s_memrealtime s[78:79]"] if c["rq"] == k else []


def pst(c, k):
    return _pst(c, k) + rqp(c, k)


def stamp(c, k, cond=None):
    return _stamp(c, k, cond) + (rqp(c, k) if cond is None else [])


def gst(c, k):
    return ["s_memtime s[60:61]", "s_waitcnt lgkmcnt(0)", f"s_mov_b32 s{S_ST+k}, s60"] if c["gst"] else []


def init_x(e):
    for r, b in zip((S_XC, S_XN, S_XNN), XB):
        e(f"s_mov_b32 s{r}, {b}")


def tr_addr(e, dst, I, G, t):
    e(f"v_lshrrev_b32 v{t}, 2, v{I}")
    e(f"v_and_b32 v{t+1}, 1, v{G}")
    e(f"v_lshrrev_b32 v{t+2}, 3, v{I}")
    e(f"v_lshl_add_u32 v{t+1}, v{t+1}, 1, v{t+2}")
    e(f"v_lshl_add_u32 v{t}, v{G}, 3, v{t}")
    e(f"v_lshlrev_b32 v{t}, 7, v{t}")
    e(f"v_lshl_add_u32 v{t}, v{t+1}, 5, v{t}")
    e(f"v_and_b32 v{t+2}, 3, v{I}")
    e(f"v_lshl_add_u32 v{t}, v{t+2}, 3, v{t}")
    e(f"s_mul_i32 s{S_T}, s{S_H}, 3")
    for k in range(3):
        if k:
            e(f"s_add_u32 s{S_T}, s{S_T}, 1")
        e(f"s_and_b32 s{S_T+1}, s{S_T}, 3")
        e(f"s_lshl_b32 s{S_T+1}, s{S_T+1}, 5")
        e(f"s_lshr_b32 s{S_T+2}, s{S_T}, 2")
        e(f"s_lshl_b32 s{S_T+2}, s{S_T+2}, 13")
        e(f"s_add_u32 s{S_T+2}, s{S_T+2}, {SLOT0}")
        e(f"v_xor_b32 v{t+2}, s{S_T+1}, v{t}")
        e(f"v_add_u32 v{dst+k}, s{S_T+2}, v{t+2}")
        e(f"v_add_u32 v{dst+3+k}, {3 * 24576}, v{dst+k}")


def tr_piece(p, addr=177):
    sl = PSLOT[p]
    out = []
    for k2 in range(2):
        for dt in range(3):
            for q in range(2):
                out.append(f"ds_read_b64_tr_b16 {vr(wqkv(3 * (p // 3) + dt, 2 * (p % 3) + k2) + 2 * q, 2)}, v{addr + dt + 3 * (sl // 3)} offset:{(sl % 3) * 24576 + k2 * 4096 + q * 512}")
    return out


CC = {}


def wqkv(f, ks):
    return (WQ, WK, WV)[f // 3] + ks * 12 + (f % 3) * 4


def wo(et, ks):
    return WO + (ks * 4 + et) * 4


AR = [256 + 244 + 4 * i for i in range(3)]
SA = [AR[0], AR[1], AR[2], G[16], 64, 68]
SB = [72, 56, 60, 76, 80, 84]
SLOTS = [SA, [72, 84, G[12], G[14], G[15], G[7]], G[0:6], [G[6], G[7], G[10], G[11], G[12], G[13]], SA, SB, SA, SB]


def slot(j, i):
    return SLOTS[j][i]


def vp(dt, ks):
    return VP + (dt * 2 + ks) * 4


def bias_loc(d):
    return BI + 4 * (d + 3)


def bias_rd(d):
    return f"ds_read_b128 {vr(bias_loc(d), 4)}, v{BA} offset:{(2 * d + 6) * 128}"


def fread(j, ks):
    if j < 4:
        return f"ds_read_b128 {vr(slot(j, ks), 4)}, v{(XA0, XA1)[ks & 1]} offset:{j * 2048 + (ks >> 1) * 8192}"
    return f"ds_read_b128 {vr(slot(j, ks), 4)}, v{OA if j < 6 else OA2} offset:{ks * 4096 + (j - 4) * 256}"


def xaddr(sreg):
    return [f"v_add_u32 v{XA0}, s{sreg}, v{XP}", f"v_xor_b32 v{XA1}, 64, v{XA0}"]


def kord(ci, n=6):
    return list(range(n))[::-1] if (CC["snake"] and ci & 1) else list(range(n))


def t_unit(t, f):
    return TU[t][f & 1]


def t_mfma(t):
    out = []
    for f in range(9):
        u = t_unit(t, f)
        for i, ks in enumerate(kord(f)):
            a, b = (slot(t, ks), wqkv(f, ks)) if f >= 6 else (wqkv(f, ks), slot(t, ks))
            out.append(mf16(u, a, b, None if i == 0 else u))
    return out


def t_cvt(t, f):
    u = t_unit(t, f)
    d = QB[t] + 2 * f if f < 3 else KB[t] + 2 * (f - 3) if f < 6 else vp(f - 6, t >> 1) + 2 * (t & 1)
    return [cvt(d, u, u + 1), cvt(d + 1, u + 2, u + 3)]


def p_unit(k, ch):
    return PU[(sum(PCH[:k]) + ch) % 4]


def p_mfma(k):
    return [mf16(p_unit(k, ch), wo(ch, ks), slot(4 + k, ks), None if i == 0 else p_unit(k, ch))
            for ch in range(PCH[k]) for i, ks in enumerate(kord(ch))]


def p_cvt(c, k, ch):
    u = p_unit(k, ch)
    if ch % 2 == 0:
        return [cvt(u, u, u + 1), cvt(u + 1, u + 2, u + 3)]
    a = u - 4
    return [cvt(a + 2, u, u + 1), cvt(a + 3, u + 2, u + 3),
            f"buffer_store_dwordx4 {vr(a,4)}, v{SV1 if ch < 2 else SV2}, {sr(SRD_OUT,4)}, s{S_SO+k} offen{NT[c['st_nt']]}"]


MCOPY = {3: G[9], 2: G[11], 1: G[16], -1: G[10], -2: G[14], -3: G[15]}


def s_mfma(masked=False):
    out = []
    for qt in (3, 2, 1, 0):
        out += [mf16(TS[qt][kt], KB[kt], QB[qt], MCOPY[qt - kt] if (masked and kt >> 1 != qt >> 1) else bias_loc(qt - kt)) for kt in range(4)]
        out += [f"v_mfma_f32_16x16x16_bf16 {vr(TS[qt][kt],4)}, {vr(KB[kt]+4,2)}, {vr(QB[qt]+4,2)}, {vr(TS[qt][kt],4)}" for kt in range(4)]
    return out


def softmax():
    out, hold = [], []
    if CC["sumv"]:
        for qt in (3, 2, 1, 0):
            L = RV + qt
            for ks in range(2):
                a, b = TS[qt][2 * ks], TS[qt][2 * ks + 1]
                regs = list(range(a, a + 4)) + list(range(b, b + 4))
                for i in range(0, 8, 2):
                    out += [f"v_exp_f32 v{regs[i]}, v{regs[i]}", f"v_exp_f32 v{regs[i+1]}, v{regs[i+1]}"] + hold
                    r = regs[i]
                    hold = [f"v_add_f32 v{L}, v{r}, v{r+1}"] if (ks == 0 and i == 0) else [f"v_add_f32 v{L}, v{r}, v{L}", f"v_add_f32 v{L}, v{r+1}, v{L}"]
                hold = hold + [cvt(a, a, a + 1), cvt(a + 1, a + 2, a + 3), cvt(a + 2, b, b + 1), cvt(a + 3, b + 2, b + 3)]
                if qt == 2 and ks == 1:
                    hold += [f"v_permlane32_swap_b32 v{RV+3}, v{RV+2}", f"v_add_f32 v{RV+3}, v{RV+3}, v{RV+2}"]
        a, b, cc, d = RV + 3, RV + 2, RV + 1, RV
        return out + hold + [
            f"v_permlane32_swap_b32 v{cc}, v{d}", f"v_add_f32 v{cc}, v{cc}, v{d}", "@mark w", "@mark w",
            f"v_permlane16_swap_b32 v{a}, v{cc}", f"v_add_f32 v{a}, v{a}, v{cc}",
            f"v_rcp_f32 v{b}, v{a}",
            f"v_mov_b32 v{cc}, v{b}", f"v_max3_f32 v{LMAX}, v{a}, v{b}, v{LMAX}",
            f"v_permlane16_swap_b32 v{b}, v{cc}", "@mark w",
            f"v_mov_b32 v{a}, v{b}", f"v_mov_b32 v{d}, v{cc}",
            f"v_permlane32_swap_b32 v{a}, v{b}", f"v_permlane32_swap_b32 v{cc}, v{d}"]
    for qt in (3, 2, 1, 0):
        for ks in range(2):
            a, b = TS[qt][2 * ks], TS[qt][2 * ks + 1]
            ex = [f"v_exp_f32 v{r}, v{r}" for r in list(range(a, a + 4)) + list(range(b, b + 4))]
            out += ex[:1] + hold + ex[1:]
            hold = [cvt(a, a, a + 1), cvt(a + 1, a + 2, a + 3), cvt(a + 2, b, b + 1), cvt(a + 3, b + 2, b + 3)]
    return out + hold


def pv_mfma():
    out = []
    for qt in (3, 2, 1, 0):
        if not CC["sumv"]:
            out += [mf16(LS, ONES, TS[qt][2 * ks], None if ks == 0 else LS) for ks in range(2)]
        out += [mf16(OU[qt][dt], vp(dt, ks), TS[qt][2 * ks], None if i == 0 else OU[qt][dt]) for dt in range(3) for i, ks in enumerate(kord(dt + 1, 2))]
    return out


def rsum(qt):
    return [f"v_rcp_f32 v{RV+qt}, v{LS}", []]


def rcheck():
    return [f"v_max3_f32 v{LMAX}, v{RV}, v{RV+1}, v{LMAX}", f"v_max3_f32 v{LMAX}, v{RV+2}, v{RV+3}, v{LMAX}",
            f"v_min3_f32 v{LMIN}, v{RV}, v{RV+1}, v{LMIN}", f"v_min3_f32 v{LMIN}, v{RV+2}, v{RV+3}, v{LMIN}"]


def norm(t):
    u0, u1, u2 = OU[t]
    mul = lambda u: [f"v_mul_f32 v{u+r}, v{RV+t}, v{u+r}" for r in range(4)]
    return (mul(u0) + [cvt(u0, u0, u0 + 1), cvt(u0 + 1, u0 + 2, u0 + 3)] +
            mul(u1) + [cvt(u0 + 2, u1, u1 + 1), cvt(u0 + 3, u1 + 2, u1 + 3),
                       f"ds_write_b128 v{OW1}, {vr(u0,4)} offset:{t * 256}"] +
            mul(u2) + [cvt(u2, u2, u2 + 1), cvt(u2 + 1, u2 + 2, u2 + 3),
                       f"ds_write_b64 v{OW2}, {vr(u2,2)} offset:{t * 256}"])


def dma_x(c, add, base, check):
    t = S_T
    out = [f"s_lshl_b32 s{t}, s{S_N}, 5", f"s_lshl_b32 s{t+1}, s{S_WY0}, 3", f"s_add_u32 s{t}, s{t}, s{t+1}",
           f"s_add_u32 s{t}, s{t}, s{S_H}", f"s_lshl_b32 s{t+2}, s{S_H}, 10", f"s_add_u32 s{t+2}, s{t+2}, s{base}"]
    for yy in range(2):
        out += [f"s_add_u32 s{t+1}, s{t}, {32 * add + 4 + 4 * yy}", f"s_and_b32 s{t+1}, s{t+1}, 511", f"s_mul_i32 s{t+1}, s{t+1}, {ROWB}"]
        if check:
            out += [f"s_cmp_lt_u32 s{S_N}, {16 - add}", f"s_cselect_b32 s{t+1}, s{t+1}, {OOB}"]
        for p in range(3):
            out += [f"s_add_u32 m0, s{t+2}, {yy * 4096 + p * (8192 - 128)}",
                    f"buffer_load_dwordx4 v{DV}, {sr(SRD_X,4)}, s{t+1} offen offset:{p * 128}{NT[c['ld_nt']]} lds"]
    return out


def dma_split(c):
    t = S_T
    prep = [f"s_lshl_b32 s{t}, s{S_N}, 5", f"s_lshl_b32 s{t+1}, s{S_WY0}, 3", f"s_add_u32 s{t}, s{t}, s{t+1}",
            f"s_add_u32 s{t}, s{t}, s{S_H}", f"s_lshl_b32 s{S_D0+2}, s{S_H}, 10", f"s_add_u32 s{S_D0+2}, s{S_D0+2}, s{S_XNN}"]
    issue = []
    for yy in range(2):
        prep += [f"s_add_u32 s{t+1}, s{t}, {68 + 4 * yy}", f"s_and_b32 s{t+1}, s{t+1}, 511", f"s_mul_i32 s{t+1}, s{t+1}, {ROWB}",
                 f"s_cmp_lt_u32 s{S_N}, 14", f"s_cselect_b32 s{S_D0+yy}, s{t+1}, {OOB}"]
        for p in range(3):
            issue += [f"s_add_u32 m0, s{S_D0+2}, {yy * 4096 + p * (8192 - 128)}",
                      f"buffer_load_dwordx4 v{DV}, {sr(SRD_X,4)}, s{S_D0+yy} offen offset:{p * 128}{NT[c['ld_nt']]} lds"]
    return prep, issue


def store_offsets(adj=0):
    t = 52
    out = [f"s_lshl_b32 s{t}, s{S_N}, 5", f"s_lshl_b32 s{t+1}, s{S_WY0}, 3", f"s_add_u32 s{t}, s{t}, s{t+1}",
           f"s_lshr_b32 s{t+1}, s{S_ODD}, 8", f"s_sub_u32 s{t+2}, s{t}, s{t+1}", f"s_add_u32 s{t}, s{t}, s{t+1}"]
    for k in range(4):
        out += [f"s_add_u32 s{t+1}, s{t if k < 2 else t+2}, {(-32 + 32 * adj + 4 + 2 * k) & 0xffffffff}",
                f"s_and_b32 s{t+1}, s{t+1}, 511", f"s_mul_i32 s{S_SO+k}, s{t+1}, {ROWB}"]
    return out


def w_piece(p):
    out = []
    for k in range(2):
        if p < 9:
            out.append(f"s_add_u32 s{S_T}, s{S_WSRC}, {(64 * (p % 3) + 32 * k) * 1152 + (p // 3) * 384}")
        else:
            out.append(f"s_add_u32 s{S_T}, s{S_WSRC2}, {(64 * (p % 3) + 32 * k) * 384}")
        for l in range(3):
            out.append(f"s_add_u32 m0, s{S_WDST}, {PSLOT[p] * 24576 + k * 4096 + l * (8192 - 128)}")
            out.append(f"buffer_load_dwordx4 v{V_WOFF if p < 9 else TMP}, {sr(SRD_WQKV if p < 9 else SRD_WO,4)}, s{S_T} offen offset:{l * 128} lds")
    return out + [f"@vtag p{p}"]


def toggle():
    return [f"v_subrev_u32 v{OA}, s{S_OWD}, v{OA}", f"v_subrev_u32 v{OA2}, s{S_OWD}, v{OA2}",
            f"v_add_u32 v{OW1}, s{S_OWD}, v{OW1}", f"v_add_u32 v{OW2}, s{S_OWD}, v{OW2}", f"s_sub_u32 s{S_OWD}, 0, s{S_OWD}"]


def prologue(e, c):
    L, I, G = 16, 17, 18
    e(f"s_lshl_b32 s{S_T}, s{S_WX}, 3")
    e(f"s_add_u32 s{S_T}, s{S_T}, 4")
    e("v_bfe_u32 v23, v0, 3, 4")
    emit_sw(e, 24, 23, 25)
    e("v_and_b32 v22, 7, v0")
    e("v_xor_b32 v24, v22, v24")
    e("v_and_b32 v21, 7, v23")
    e(f"v_add_u32 v25, s{S_T}, v21")
    e("v_and_b32 v25, 511, v25")
    e("v_mul_u32_u24 v25, 0x180, v25")
    e(f"v_lshl_add_u32 v{DV}, v24, 4, v25")
    e("v_and_b32 v24, 2, v23")
    e("v_lshrrev_b32 v25, 1, v23")
    e("v_and_b32 v25, 4, v25")
    e("v_or_b32 v24, v24, v25")
    e("v_xor_b32 v24, v22, v24")
    e("v_mul_u32_u24 v25, 1152, v21")
    e(f"v_lshl_add_u32 v{V_WOFF}, v24, 4, v25")
    e("v_and_b32 v24, 2, v23")
    e("v_lshlrev_b32 v24, 1, v24")
    e("v_xor_b32 v24, v22, v24")
    e("v_mul_u32_u24 v25, 0x180, v21")
    e(f"v_lshl_add_u32 v{TMP}, v24, 4, v25")
    e(f"s_mul_i32 s{S_WSRC}, s{S_H}, {8 * 1152}")
    e(f"s_lshl_b32 s{S_WDST}, s{S_H}, 10")
    e(f"s_add_u32 s{S_WDST}, s{S_WDST}, {SLOT0}")
    init_x(e)
    e(f"s_mov_b32 s{S_N}, 0")
    e("s_waitcnt lgkmcnt(0)")
    def rpb():
        srd(e, SRD_RPB, 54, 225 * 4 * 2)
        e("v_and_b32 v27, 63, v0")
        e("v_lshlrev_b32 v27, 4, v27")
        e([f"s_lshl_b32 s{S_T}, s{S_H}, 11", f"s_add_u32 m0, s{S_T}, {BIAS}", f"buffer_load_dwordx4 v27, {sr(SRD_RPB,4)}, 0 offen lds",
           f"buffer_load_dwordx4 v27, {sr(SRD_RPB,4)}, 0 offen offset:1024 lds", "@vtag rpb"])
    srd(e, SRD_WQKV, 50, 192 * 576 * 2)
    for what in ["rabp", "pabr", "apbr", "abpr"][c["ord0"]]:
        if what == "r": rpb()
        if what == "p": weight_pf(e)
        if what == "a": e(w_piece(0))
        if what == "b": e(w_piece(1))
    srd(e, SRD_X, 48, XBYTES)
    if c["x0_early"]:
        e(w_piece(2) + ["s_barrier"] + dma_x(c, 0, S_XC, False) + ["@vtag x0"])
    if c["x0_early"] == 2:
        e(dma_x(c, 1, S_XN, False) + ["@vtag x1"])
    e(pst(c, 4))
    srd(e, SRD_WO, 52, 192 * 192 * 2)
    srd(e, SRD_OUT, 56, XBYTES)
    e(f"v_and_b32 v{L}, 63, v0")
    e(f"v_and_b32 v{I}, 15, v{L}")
    e(f"v_lshrrev_b32 v{G}, 4, v{L}")
    emit_sw(e, 19, I, 20)
    e(f"v_xor_b32 v20, v{G}, v19")
    e("v_lshlrev_b32 v20, 4, v20")
    e(f"v_lshl_add_u32 v{XP}, v{I}, 7, v20")
    e(f"v_lshlrev_b32 v22, 4, v{I}")
    e(f"v_lshl_add_u32 v23, v{G}, 10, v22")
    e(f"s_and_b32 s{S_ODD}, s{S_H}, 1")
    e(f"s_lshl_b32 s{S_T}, s{S_ODD}, 9")
    e(f"s_lshl_b32 s{S_ODD}, s{S_ODD}, 10")
    e(f"s_add_u32 s{S_T}, s{S_T}, {OB1}")
    e(f"v_add_u32 v{OA}, s{S_T}, v23")
    e(f"s_lshl_b32 s{S_T}, s{S_H}, 12")
    e(f"s_add_u32 s{S_T}, s{S_T}, {OB0}")
    e(f"v_add_u32 v{OW1}, s{S_T}, v23")
    e(f"s_lshl_b32 s{S_T}, s{S_H}, 11")
    e(f"s_add_u32 s{S_T}, s{S_T}, {OB0 + 16384}")
    e(f"v_lshrrev_b32 v23, 1, v{G}")
    e("v_lshl_add_u32 v24, v23, 10, v22")
    e(f"v_and_b32 v25, 1, v{G}")
    e("v_lshl_add_u32 v24, v25, 3, v24")
    e(f"v_add_u32 v{OW2}, s{S_T}, v24")
    e(f"s_mov_b32 s{S_OWD}, {OB1 - OB0}")
    e(f"v_lshrrev_b32 v24, 3, v{I}")
    e("v_sub_u32 v24, v24, v23")
    e("v_mul_i32_i24 v24, 15, v24")
    e(f"v_and_b32 v26, 7, v{I}")
    e("v_lshlrev_b32 v25, 2, v25")
    e("v_sub_u32 v26, v26, v25")
    e("v_add3_u32 v24, v24, v26, 19")
    e(f"s_mul_i32 s{S_T}, s{S_H}, 2050")
    e(f"s_add_u32 s{S_T}, s{S_T}, {BIAS}")
    e(f"v_lshl_add_u32 v{BA}, v24, 3, s{S_T}")
    e(f"s_lshl_b32 s{S_T}, s{S_WX}, 3")
    e(f"s_add_u32 s{S_T}, s{S_T}, 4")
    e(f"v_and_b32 v23, 7, v{I}")
    e(f"v_add_u32 v23, s{S_T}, v23")
    e("v_and_b32 v23, 511, v23")
    e("v_mul_u32_u24 v23, 0x180, v23")
    e(f"v_lshrrev_b32 v24, 3, v{I}")
    e(f"v_mul_u32_u24 v24, {ROWB}, v24")
    e("v_add_u32 v23, v23, v24")
    e(f"v_lshl_add_u32 v24, v{G}, 4, v23")
    e(f"s_lshr_b32 s{S_T}, s{S_H}, 1")
    e(f"s_lshl_b32 s{S_T}, s{S_T}, 6")
    e(f"s_add_u32 s{S_T+1}, s{S_T}, 256")
    e(f"v_add_u32 v{SV2}, s{S_T+1}, v24")
    e(f"s_lshr_b32 s{S_T+1}, s{S_ODD}, 3")
    e(f"s_add_u32 s{S_T}, s{S_T}, s{S_T+1}")
    e(f"v_add_u32 v{SV1}, s{S_T}, v24")
    tr_addr(e, 177, I, G, 20)
    e(f"v_and_b32 v21, 3, v{L}")
    e("v_cmp_eq_u32 vcc, 0, v21")
    e("v_mov_b32 v20, 0x3f803f80")
    if c["sparse1"]:
        e("v_cndmask_b32 v20, 0, v20, vcc")
    for r in range(4):
        e(f"v_accvgpr_write_b32 {vr(ONES+r)}, v20")
    e(f"s_mov_b32 s46, {f32(QSCALE)}")
    e("s_mov_b32 s47, s46")
    e("s_mov_b32 s44, 0xffff0000")
    e(f"s_mul_i32 s{S_WSRC2}, s{S_H}, {8 * 384}")
    e(xaddr(S_XC))
    e(pst(c, 5))
    return first_window(e, c)


def scale_ops(regs, pk):
    out = []
    for gi in range(0, len(regs), 4):
        grp = regs[gi:gi + 4]
        T = 40 + 8 * ((gi // 4) % 3)
        for j, r in enumerate(grp):
            out += [f"v_lshlrev_b32 v{T+2*j}, 16, v{r}", f"v_and_b32 v{T+2*j+1}, s44, v{r}"]
        for j, r in enumerate(grp):
            out += [f"v_pk_mul_f32 {vr(T+2*j,2)}, {vr(T+2*j,2)}, s[46:47]"] if pk else [f"v_mul_f32 v{T+2*j}, s46, v{T+2*j}", f"v_mul_f32 v{T+2*j+1}, s46, v{T+2*j+1}"]
        out += [cvt(r, T + 2 * j, T + 2 * j + 1) for j, r in enumerate(grp)]
    return out


def merge(a, b):
    out, j = [], 0
    for i, x in enumerate(a):
        out.append(x)
        while j < len(b) and (j + 1) * len(a) <= (i + 1) * len(b):
            out.append(b[j]); j += 1
    return out + b[j:]


def spread_dma(s, a, b, ins):
    groups, cur = [], []
    for x in ins:
        if x.startswith("@vtag"):
            groups[-1].append(x)
            continue
        cur.append(x)
        if x.startswith("buffer"):
            groups.append(cur); cur = []
    last = a - 1
    for k, gr in enumerate(groups):
        pos = max(a + 1 + k * (b - a - 1) // len(groups), last + 2)
        while pos < b - 1 and s.after[pos]:
            pos += 1
        pos = min(pos, b - 1)
        n = next(i for i, x in enumerate(gr) if x.startswith("buffer"))
        s.put(max(pos - 1, last), gr[:n]); s.put(pos, gr[n:])
        last = pos
    return last


def walker(e):
    e("s_mov_b64 exec, 0")
    for w in range(3):
        e(f"s_cmp_eq_u32 s{S_H}, {w}")
        e(f"s_cbranch_scc1 L_hop_{w}_0")
    e("s_branch L_hop_3_0")
    e("L_walk_done:")
    e("s_mov_b64 exec, -1")


def first_window(e, c):
    FB = [G[0:6], [G[6], G[7], G[8], AR[0], AR[1], AR[2]]]
    xr = lambda t: [f"ds_read_b128 {vr(FB[t & 1][ks], 4)}, v{(XA0, XA1)[ks & 1]} offset:{t * 2048 + (ks >> 1) * 8192}" for ks in range(6)]
    sync = lambda p: [f"@vwait p{p}", "s_waitcnt lgkmcnt(0)", "s_barrier"]

    def seg(m, nxt):
        bb = []
        for t in range(4):
            for f in range(3):
                u = G[12 + (3 * t + f) % 2]
                for ks in range(6):
                    a, b = (FB[t & 1][ks], wqkv(3 * m + f, ks)) if m == 2 else (wqkv(3 * m + f, ks), FB[t & 1][ks])
                    bb.append(mf16(u, a, b, None if ks == 0 else u))
        s = Sched(bb)
        tail = []
        for t in range(4):
            if t < 3 or nxt:
                for k, x in enumerate(xr((t + 1) % 4)):
                    s.put(18 * t + [0, 1, 3, 4, 5, 6][k], x)
                s.put(18 * t + 16, f"@waitr {FB[(t + 1) & 1][5]}")
            for f in range(3):
                u = G[12 + (3 * t + f) % 2]
                d = QB[t] + 2 * f if m == 0 else KB[t] + 2 * f if m == 1 else vp(f, t >> 1) + 2 * (t & 1)
                w = [cvt(d, u, u + 1), cvt(d + 1, u + 2, u + 3)]
                idx = 18 * t + 6 * f + 8
                if idx < 72:
                    s.put(idx, w)
                else:
                    tail += w
        return s, tail

    sc = [WQ + j for j in range(72)]
    if not c["x0_early"]:
        e(w_piece(2) + (["s_barrier"] if c["q_bar"] else []) + dma_x(c, 0, S_XC, False) + ["@vtag x0"])
    e(stamp(c, 1))
    e([f"v_mov_b64 {vr(BI + r, 2)}, 0" for r in range(0, 28, 2)])
    if c["hop"] and c["hop_pos"] == 0:
        walker(e)
    if c["x0_early"]:
        e(sync(2) + tr_piece(0) + tr_piece(1) + tr_piece(2))
    else:
        e(sync(1) + tr_piece(0) + tr_piece(1))
        e(sync(2) + tr_piece(2))
    e(pst(c, 11))
    so = scale_ops(sc, True)
    e(so if c["x0_early"] == 2 else merge(so[:c['x1_span']], w_piece(3)) +
      merge(so[c['x1_span']:], [f"ds_read_u16_d16_hi v{bias_loc(d)+r}, v{BA} offset:{8 * (15 * (2 * d + 6) + 3 - r)}" for d in range(-3, 4) for r in range(4)]))
    ew = Em()
    wo_block(ew)
    wo_i = [l.strip() for l in ew.out if not l.strip().startswith(("s_waitcnt", "s_nop"))]
    wo_a = [x for x in wo_i if not x.startswith("ds_read")]
    wo_r = [x for x in wo_i if x.startswith("ds_read")]
    e(wo_a)
    M = G[14] + 3
    e(f"v_lshrrev_b32 v{M-1}, 2, v40")
    e(f"v_xor_b32 v{M}, v40, v{M-1}")
    e(f"s_cmp_eq_u32 s{S_WX}, 63")
    e(f"s_cselect_b32 s{S_T}, 4, 0")
    e(f"v_and_b32 v{M}, s{S_T}, v{M}")
    e(f"v_cmp_eq_u32 vcc, 0, v{M}")
    e(f"s_cmp_eq_u32 s{S_WY0}, 63")
    e(f"s_cselect_b32 s{S_T}, {f32(MASKV)}, 0")
    e(f"v_mov_b32 v{M-1}, s{S_T}")
    e(f"v_mov_b32 v{M-2}, {f32(MASKV)}")
    e(f"v_cndmask_b32 v{M}, 0, v{M-1}, vcc")
    e(f"v_cndmask_b32 v{M-1}, v{M-2}, 0, vcc")
    e(f"s_mov_b32 s45, {f32(LOG2E)}")
    bfma = [f"v_fma_f32 v{BI+r}, v{BI+r}, s45, v{M-1}" for r in range(28)]
    e("s_waitcnt lgkmcnt(0)")
    if c["hop"] and c["hop_pos"] == 1:
        walker(e)
    e(w_piece(4))
    e(["@vwait x0", "s_barrier"] + xr(0))
    e(pst(c, 6))
    s, tail = seg(0, True)
    qs = c["q_sync"]
    s.put(qs, ["@vwait p4", "s_barrier"])
    spread_dma(s, c["q_d0"], 72, w_piece(5) + w_piece(6) + w_piece(7))
    i, left = pack(s, qs + 1, tr_piece(3) + tr_piece(4), 8)
    i, l2 = pack(s, 0, bfma, 8)
    e(s.flat())
    e(left + ["@vwait p5", "s_barrier"] + tr_piece(5) + tail + l2)
    e(pst(c, 7))
    s, tail = seg(1, True)
    ks_ = c["k_sync"]
    s.put(8, ["s_waitcnt lgkmcnt(0)", "@vwait p6", "s_barrier"])
    s.put(ks_, ["@vwait p8", "s_barrier"])
    spread_dma(s, 9, 72, w_piece(8) + w_piece(10) + w_piece(11))
    i, left = pack(s, 9, tr_piece(6), 8, stop=ks_)
    i, left = pack(s, ks_ + 1, left + tr_piece(7) + tr_piece(8), 8)
    e(s.flat())
    e(left + tail)
    e(pst(c, 8))
    s, tail = seg(2, False)
    s.put(8, ["s_waitcnt lgkmcnt(0)", "s_barrier"])
    first0 = lambda x: int(x.split("offset:")[1]) < 24576 and x.split(",")[1].split()[0] not in ("v9", "v2")
    wo_r.sort(key=first0)
    n0 = min(c["wo_v"], sum(1 for x in wo_r if not first0(x)))
    vs = c["v_sync"]
    s.put(vs, ["@vwait p11", "s_barrier"])
    spread_dma(s, 9, c["v_d1"], w_piece(9) + dma_x(c, 1, S_XN, False) + ["@vtag x1"])
    M = G[14] + 3
    mc = [f"v_add_f32 v{MCOPY[d]+r}, v{M}, v{bias_loc(d)+r}" for d in (3, 2, 1, -1, -3, -2) for r in range(4)]
    i2, left = pack(s, vs + 1, wo_r[:n0], 8)
    i2, l2 = pack(s, 9, mc, 8)
    left += l2
    e(s.flat())
    e(left + tail + xaddr(S_XN) + [
        f"s_mov_b32 s{S_XC}, {XB[1]}", f"s_mov_b32 s{S_XN}, {XB[2]}", f"s_mov_b32 s{S_XNN}, {XB[0]}", f"s_mov_b32 s{S_N}, 1",
        f"s_mov_b32 s{S_SO+3}, {OOB}", "@vwait p9", "s_barrier"])
    e(pst(c, 9))
    s = Sched(s_mfma(True))
    n1 = n0 + 8
    s.put(0, wo_r[n0:n0 + 2]);
    s.put(2, wo_r[n0 + 2:n0 + 4]); s.put(3, [f"s_cmp_lg_u32 s{S_SAFE}, 0"] + wo_r[n0 + 4:n0 + 5])
    s.put(-1, wo_r[n0 + 5:n1])
    s.put(4, "s_cbranch_scc1 L_special0")
    i, left = pack(s, 7, c["_pre_s"], 8)
    e(s.flat())
    e(left)
    e(gst(c, 4))
    e("L_enter:")
    return merge(wo_r[n1:], dma_split(c)[0])


def wo_block(e):
    T = 40
    L, I, G = T, T + 1, T + 2
    e(f"v_mbcnt_lo_u32_b32 v{L}, -1, 0")
    e(f"v_mbcnt_hi_u32_b32 v{L}, -1, v{L}")
    e(f"v_and_b32 v{I}, 15, v{L}")
    e(f"v_lshrrev_b32 v{G}, 4, v{L}")
    e(f"s_lshr_b32 s{S_T}, s{S_H}, 1")
    e(f"v_lshrrev_b32 v{T+3}, 3, v{I}")
    e(f"v_xor_b32 v{T+3}, s{S_T}, v{T+3}")
    e(f"v_and_b32 v{T+4}, 3, v{I}")
    e(f"v_lshlrev_b32 v{T+4}, 4, v{T+4}")
    e(f"v_lshl_add_u32 v{T+4}, v{T+3}, 6, v{T+4}")
    e(f"v_lshrrev_b32 v{T+5}, 2, v{I}")
    e(f"v_lshl_add_u32 v{T+4}, v{T+5}, 7, v{T+4}")
    e(f"v_add_u32 v{T+4}, {SLOT0 + 2 * 24576}, v{T+4}")
    e(f"v_lshl_add_u32 v{T+6}, v{G}, 9, v{T+4}")
    e(f"v_and_b32 v{T+7}, 1, v{G}")
    e(f"v_lshl_add_u32 v{T+8}, v{T+7}, 10, v{T+4}")
    e(f"v_lshrrev_b32 v{T+7}, 1, v{G}")
    rowoff = lambda r: (r >> 6) * 24576 + (r & 63) * 128
    e(f"s_lshl_b32 s{S_T}, s{S_ODD}, 3")
    A = [12, 13, 14, 15, 9, 2]
    e(f"v_add_u32 v{A[0]}, s{S_T}, v{T+6}")
    e(f"v_add_u32 v{A[1]}, 16384, v{T+6}")
    for x, ks in enumerate((4, 5)):
        b0 = 96 * (ks - 4) + 32
        e(f"v_mul_u32_u24 v{T+9}, {rowoff(b0 + 48) - rowoff(b0)}, v{T+7}")
        e(f"v_add3_u32 v{A[2+2*x]}, v{T+9}, v{T+8}, s{S_T}")
        e(f"v_add_u32 v{T+9}, v{T+9}, v{T+8}")
        e(f"v_add_u32 v{A[3+2*x]}, 16384, v{T+9}")
    for ks in range(6):
        for et in range(4):
            for q in range(2):
                if ks < 4:
                    ad, off = A[et >> 1], rowoff(48 * ks + 16 * q)
                else:
                    ad, off = A[2 + 2 * (ks - 4) + (et >> 1)], rowoff(96 * (ks - 4) + 32 + 4 * q)
                e(f"ds_read_b64_tr_b16 {vr(wo(et, ks) + 2 * q, 2)}, v{ad} offset:{off + (et & 1) * 8}")


O_PV, O_T, O_S, O_PJ, N_BB = 0, [32, 86, 140, 194], 248, 280, 352
O_P = [280, 292, 304, 328]


def pv_fill(s, c, rest, bud):
    s.put(2, p_cvt(c, 3, 3)[:2]); s.put(3, p_cvt(c, 3, 3)[2])
    for x, qt in enumerate((3, 2, 1, 0)):
        s.put(8 * x + 4, rsum(qt)[0]); s.put(8 * x + 5, rsum(qt)[1])
    i, left = pack(s, 0, rest, bud, stop=23)
    assert not left, left
    for x, qt in enumerate((3, 2, 1, 0)):
        for ks in range(2):
            b = TS[qt][2 * ks + 1]
            w = [k for k in range(32) if cvt(TS[qt][2 * ks] + 3, b + 2, b + 3) in s.after[k]]
            lim = {3: -1, 2: -1, 1: 13, 0: 22}[qt]
            assert not w or w[0] <= lim, (qt, ks, w)
    return i


def build(c):
    import asmdsl
    asmdsl.ONE_DS[:] = [1]
    bb = pv_mfma() + t_mfma(0) + t_mfma(1) + t_mfma(2) + t_mfma(3) + s_mfma()
    for k in range(4):
        bb += p_mfma(k)
    assert len(bb) == N_BB
    s = Sched(bb)
    bud = c["bud"]
    start = O_T + O_P
    bar = O_T[3] + c["bar_at"]

    def rdgroup(j, pos, idxs):
        i, left = pack(s, pos, [fread(j, i) for i in idxs], bud)
        assert not left
        return i

    def rd2(j, pos, idxs):
        idxs = list(idxs)
        while idxs:
            while s.after[pos]:
                pos += 1
            s.put(pos, [fread(j, i) for i in idxs[:2]])
            idxs = idxs[2:]
            pos += 2
        return pos - 2

    for t in range(4):
        for f in range(9):
            s.put(O_T[t] + 6 * f + 8, t_cvt(t, f))
    for k in range(4):
        for ch in range(PCH[k]):
            idx = O_P[k] + 6 * ch + 8
            if idx < N_BB:
                w = p_cvt(c, k, ch)
                s.put(idx, w[:2]); s.put(idx + 1, w[2:])
    for j in (1, 2, 3):
        rdgroup(j, start[j] - 15, range(6))
    rdgroup(4, O_S - 9, range(4))
    s.put(O_S + 15, [fread(4, 4), fread(4, 5)])
    sfill = [fread(4, 4), fread(4, 5)]
    for x in range(4):
        s.put(8 * x + 4, "@mark r")
    rd2(5, O_PJ, range(6))
    if c["p2e"]:
        rd2(6, O_PJ + 9, range(2))
        rd2(6, O_P[1], range(2, 6))
    else:
        rd2(6, O_P[1], range(6))
    rd2(7, O_P[2] + 4, range(6))
    rd2(0, c["t0r"], range(6))
    for j in range(8):
        s.put(start[j] - 1, f"@waitr {slot(j, 5 if j else 1)}")
    s.put(start[0] + 1, f"@waitr {slot(0, 3)}"); s.put(start[0] + 3, f"@waitr {slot(0, 5)}")
    s.put(bar, ["@waitw", "s_waitcnt vmcnt(12)", "s_barrier"])
    s.put(O_S + 1, [f"s_cmp_lg_u32 s{S_SAFE}, 0"])
    s.put(O_S + 4, ["s_cbranch_scc1 L_special", "@mark special"])
    s.put(O_PJ - 1, ["L_pj:"])
    s.put(N_BB - 2, [f"s_cmp_lt_u32 s{S_N}, 16"])
    s.put(N_BB - 1, ["@mark w", "@mark w"])
    sm = softmax()
    i, r1 = pack(s, O_S + 7, sm, bud, stop=O_PJ)
    i, rest = pack(s, O_PJ, r1, bud)
    pre_s, pre_p = sm[:len(sm) - len(r1)], r1[:len(r1) - len(rest)]
    i = pv_fill(s, c, rest, bud)
    print(f"X: softmax done at {i} (tail {len(rest)})", file=sys.stderr)
    iss = dma_split(c)[1]
    for k in range(6):
        pos = c["dma0"] + c["dstep"] * k
        while s.after[pos] or sum(cost(x) for x in s.after[pos - 1]) > 4:
            pos += 1
        s.put(pos - 1, iss[2 * k]); s.put(pos, iss[2 * k + 1])
    i, left = pack(s, max(i, 10), norm(3) + norm(2), bud, over=True)
    i, left = pack(s, max(i, 35), norm(1) + norm(0) + toggle() + rcheck(), bud, stop=start[2] - 16, over=True)
    assert not left, left
    print(f"X: norm done at {i}", file=sys.stderr)
    i, left = pack(s, O_T[2], store_offsets() + [
        f"s_mov_b32 s{S_T}, s{S_XC}", f"s_mov_b32 s{S_XC}, s{S_XN}", f"s_mov_b32 s{S_XN}, s{S_XNN}", f"s_mov_b32 s{S_XNN}, s{S_T}",
        f"s_add_u32 s{S_N}, s{S_N}, 1"] + dma_split(c)[0], bud, stop=bar)
    assert not left and pos < O_T[2], (left, pos)
    i, left = pack(s, bar + 1, xaddr(S_XC), bud)
    if c["seg"]:
        for k, pos in enumerate([[0, 32, 86, 140, 194, 248, 280], [16, 60, 113, 292, 304, 328, 350]][c["seg"] - 1]):
            s.after[pos].insert(0, f"s_memtime s[{80+2*k}:{81+2*k}]")
        s.pre[0:0] = ["s_waitcnt lgkmcnt(0)", f"s_cmp_eq_u32 s{S_N}, 9"] + [f"s_cselect_b32 s{S_ST+[4,5,11,1,6,7,8][k]}, s{80+2*k}, s{S_ST+[4,5,11,1,6,7,8][k]}" for k in range(7)]
    return s, pre_s, pre_p, rest, sfill


def kernel(e, c):
    import asmdsl
    asmdsl.ONE_DS[:] = []
    e(f"s_mov_b32 s{S_SPEC}, 0")
    s, pre_s, pre_p, rest, sfill = build(c)
    asmdsl.ONE_DS[:] = []
    c["_pre_s"] = pre_s
    assert c["rot"] == 15
    wo_rest = prologue(e, c)
    e(merge(pre_p[:-8], wo_rest) + pre_p[-8:] + [f"v_mov_b32 v{LMAX}, 1.0", f"v_mov_b32 v{LMIN}, 1.0", f"v_subrev_u32 v{OA2}, s{S_ODD}, v{OA}", "s_waitcnt lgkmcnt(0)", "@vwait x1"] + dma_x(c, 1, S_XN, False) +
      [f"buffer_store_dword v{SV1}, v{SV1}, {sr(SRD_OUT,4)}, s{S_SO+3} offen"] * 5 + ["s_barrier"])
    e(stamp(c, 2))

    def body(e):
        e(stamp(c, 3, c["stamp_n"]))
        e(stamp(c, 10, 1))
        e(s.flat())
        e("L_join:")
        e("s_cbranch_scc1 L_loop")

    e2 = Em()
    body(e2)
    st_back = e2.state()
    e.lgkm(0)
    e(".p2align 6")
    e("L_loop:")
    e.set_state(st_back)
    body(e)
    e(f"s_cmp_eq_u32 s{S_SPEC}, 0")
    e("s_cbranch_scc1 L_last")
    st = e.state()
    e(p_cvt(c, 3, 3))
    e("s_branch L_end" if diag(c) else "s_endpgm")
    e("L_last:")
    e.set_state(st)
    e(stamp(c, 12))
    sp = Sched(pv_mfma())
    i = pv_fill(sp, c, rest, 8)
    i, left = pack(sp, max(i, 10), norm(3) + norm(2), 8, over=True)
    e(sp.flat())
    e(rcheck() + toggle()[:2])
    e(f"v_cmp_nle_f32 vcc, {f32(2.0 ** -40)}, v{LMIN}")
    e(f"s_mov_b64 {sr(S_T,2)}, vcc")
    e(f"v_cmp_nge_f32 vcc, {f32(2.0 ** 40)}, v{LMAX}")
    e(f"s_or_b64 vcc, vcc, {sr(S_T,2)}")
    e(f"s_lshl_b32 s{S_T+3}, s{S_H}, 2")
    e(f"s_add_u32 s{S_T+3}, s{S_T+3}, {FLAG}")
    e(f"v_mov_b32 v{XA0}, s{S_T+3}")
    e("s_cmp_lg_u64 vcc, 0")
    e(f"s_cselect_b32 s{S_T+2}, {0 if c['no_flag'] else 1}, {c['force_safe']}")
    e(f"v_mov_b32 v{XA1}, s{S_T+2}")
    e(f"ds_write_b32 v{XA0}, v{XA1}")
    e(f"v_mov_b32 v{XA1}, {FLAG}")
    e(merge(left + norm(1) + norm(0), store_offsets()))
    e(f"s_mov_b32 s{S_SPEC}, 2")
    e("s_waitcnt lgkmcnt(0)")
    e("s_barrier")
    e(f"ds_read_b128 {vr(G[0],4)}, v{XA1}")
    e([fread(4, ks) for ks in range(6)])
    e(f"v_or3_b32 v{G[0]}, v{G[0]}, v{G[0]+1}, v{G[0]+2}")
    e(f"v_or_b32 v{G[0]}, v{G[0]}, v{G[0]+3}")
    e(f"v_readfirstlane_b32 s{S_T}, v{G[0]}")
    e(f"s_andn2_b32 s{S_T}, s{S_T}, s{S_SAFE}")
    e(f"s_cmp_eq_u32 s{S_T}, 0")
    e("s_waitcnt lgkmcnt(0)")
    e("s_cbranch_scc1 L_pj")
    e(f"s_mov_b32 s{S_SAFE}, 1")
    e("s_waitcnt vmcnt(0) lgkmcnt(0)")
    e("v_mbcnt_lo_u32_b32 v0, -1, 0")
    e("v_mbcnt_hi_u32_b32 v0, -1, v0")
    e(f"s_lshl_b32 s{S_T}, s{S_H}, 6")
    e(f"v_add_u32 v0, s{S_T}, v0")
    e("s_barrier")
    e("s_branch L_again")
    e("L_special0:")
    e.set_state(e.marks["special"])
    e(s_mfma(True)[5:])
    e("s_branch L_sp2")
    e("L_special:")
    e.set_state(e.marks["special"])
    e(s_mfma()[5:] + sfill)
    e("L_sp2:")
    e("s_nop 15")
    M = QB[0]
    for qt in range(4):
        regs = [TS[qt][kt] + r for kt in range(4) for r in range(4)]
        e(f"v_max_f32 v{M}, v{regs[0]}, v{regs[1]}")
        for r in range(2, 16, 2):
            e(f"v_max3_f32 v{M}, v{regs[r]}, v{regs[r+1]}, v{M}")
        for sw in (32, 16):
            e(f"v_mov_b32 v{M+1}, v{M}")
            e(f"v_permlane{sw}_swap_b32 v{M}, v{M+1}")
            e(f"v_max_f32 v{M}, v{M}, v{M+1}")
        for r in regs:
            e(f"v_sub_f32 v{r}, v{r}, v{M}")
    e(pre_s)
    e("s_waitcnt lgkmcnt(0)")
    e("s_nop 7")
    e(f"s_cmp_eq_u32 s{S_N}, 1")
    e("s_cbranch_scc1 L_enter")
    e("s_branch L_pj")


HEADER = """; Swin shifted-window attention, fused: QKV projection + softmax(QK^T*scale + bias + mask) V + output projection.
; @launch grid=(256,1,1) block=(256,1,1) lds={lds}
.amdgcn_target "amdgcn-amd-amdhsa--gfx950"
.text
.globl {name}
.p2align 8
.type {name},@function
{name}:
"""


def isize(l):
    t = l.split(";")[0].strip()
    if not t or t.endswith(":") or t.startswith("."):
        return 0
    op = t.split()[0]
    if op.startswith(("v_mfma", "ds_", "buffer_", "global_", "v_cvt_pk", "v_max3", "v_or3", "v_fma", "v_pk", "v_lshl_add", "v_add3", "v_bfe", "s_load", "s_mem", "v_mbcnt")):
        return 8
    import re
    lit = [x for x in re.findall(r"[ ,](-?\d+|0x[0-9a-f]+)(?=,|$)", t) if not (-16 <= int(x, 0) <= 64)]
    return 8 if (lit and not op.startswith(("s_waitcnt", "s_nop", "s_setprio"))) else 4


def add_hops(lines, H):
    a = lines.index("L_walk_done:")
    b = lines.index("L_loop:") - 2
    c0 = lines.index("L_last:")
    c1 = next(i for i in range(c0, len(lines)) if "s_cbranch_scc1 L_pj" in lines[i])
    where = []
    for lo, hi in ((a + 2, b), (c0 + 1, c1)):
        pos, nxt = 0, (H if lo < b else 0)
        for i in range(lo, hi):
            if pos >= nxt and not lines[i].endswith(":") and "m0" not in lines[i - 1]:
                where.append(i)
                nxt = pos + H
                pos += 4
            pos += isize(lines[i])
    n = len(where)
    out, k = [], 0
    for i, l in enumerate(lines):
        if k < n and i == where[k]:
            w, j = k % 4, k // 4
            out.append(f"L_hop_{w}_{j}:")
            out.append(f"  s_cbranch_execz L_hop_{w}_{j+1}" if k + 4 < n else "  s_cbranch_execz L_walk_done")
            k += 1
        out.append(l)
    print(f"X: {n} hops", file=sys.stderr)
    return out


def generate(**kw):
    c = dict(CFG)
    c.update(kw)
    CC.update(c)
    if c["p2e"]:
        SLOTS[6] = [G[1], G[3]] + SA[:4]
    e = Em()
    e("s_cmp_ge_u32 s2, 256")
    e("s_cbranch_scc1 L_end")
    if c["stamp"]:
        for k in range(16):
            e(f"s_mov_b32 s{S_ST+k}, 0")
        e(stamp(c, 0))
        e("s_memrealtime s[96:97]")
        e("s_load_dwordx2 s[98:99], s[0:1], 64")
    if c["spin"]:
        e("s_memtime s[64:65]")
        e("s_memrealtime s[66:67]")
    e(f"s_mov_b32 s{S_SAFE}, 0")
    e("L_again:")
    e("s_load_dwordx4 s[48:51], s[0:1], 0")
    e("s_load_dwordx4 s[52:55], s[0:1], 16")
    e("s_load_dwordx2 s[56:57], s[0:1], 48")
    if c["cpf"]:
        e("s_getpc_b64 s[42:43]")
        e("s_bfe_u32 s44, s2, 0x20003")
        e("s_lshl_b32 s44, s44, 6")
        e("v_subrev_u32 v2, s44, v0")
        e("v_cmp_gt_u32 vcc, 64, v2")
        e("s_bfe_u32 s44, s2, 0x10005")
        e("s_lshl_b32 s44, s44, 14")
        e("v_lshl_add_u32 v2, v0, 6, s44")
        e(f"v_min_u32 v2, L_end-{NAME}-256, v2")
        e("s_cbranch_vccz L_nocpf")
        e("v_mov_b32 v3, s43")
        e("v_add_co_u32 v2, vcc, s42, v2")
        e("s_nop 1")
        e("v_addc_co_u32 v3, vcc, 0, v3, vcc")
        e("global_load_dword v64, v[2:3], off")
        e("L_nocpf:")
    e("v_lshrrev_b32 v1, 6, v0")
    e(f"v_readfirstlane_b32 s{S_WAVE}, v1")
    e(f"s_and_b32 s{S_WX}, s2, 63")
    e(f"s_lshr_b32 s{S_WY0}, s2, 6")
    e(f"s_add_u32 s{S_WY0}, s{S_WY0}, {4 * c['rot']}")
    e(f"s_mov_b32 s{S_H}, s{S_WAVE}")
    kernel(e, c)
    e("L_end:")
    if c["spin"]:
        e("s_cmp_ge_u32 s2, 256")
        e("s_cbranch_scc1 L_end4")
        e("s_waitcnt vmcnt(0)")
        e("s_memtime s[72:73]")
        e("s_waitcnt lgkmcnt(0)")
        q = c["spin_q"]
        if c["rq"] == 13:
            e("s_memrealtime s[78:79]"); e("s_waitcnt lgkmcnt(0)")
        if c["rq"] >= 0:
            e("s_sub_u32 s76, s78, s66"); e(f"s_lshl_b32 s76, s76, {c['rqs']}")
        elif q == 0:
            e("s_mov_b32 s76, 0")
        elif q == 1:
            e("s_sub_u32 s76, s72, s64"); e("s_sub_u32 s76, s76, 100000"); e("s_lshr_b32 s76, s76, 3")
        elif q == 2:
            e("s_sub_u32 s76, s78, s64"); e("s_lshr_b32 s76, s76, 2")
        elif q == 3:
            e("s_sub_u32 s76, s80, s64"); e("s_lshr_b32 s76, s76, 2")
        elif q == 4:
            e("s_sub_u32 s76, s72, s82"); e("s_lshr_b32 s76, s76, 1")
        e(f"s_add_u32 s76, s76, {c['spin']}")
        e("L_spin:")
        e("s_sleep 4")
        e("s_memrealtime s[74:75]")
        e("s_waitcnt lgkmcnt(0)")
        e("s_sub_u32 s74, s74, s66")
        e("s_cmp_lt_u32 s74, s76")
        e("s_cbranch_scc1 L_spin")
        e("L_end4:")
    if c["stamp"]:
        e("s_cmp_ge_u32 s2, 256")
        e("s_cbranch_scc1 L_end2")
        e(gst(c, 1))
        e("s_waitcnt vmcnt(0)")
        e(stamp(c, 13))
        e("s_memrealtime s[60:61]")
        e("s_waitcnt lgkmcnt(0)")
        e(f"s_mov_b32 s{S_ST+14}, s96")
        e(f"s_mov_b32 s{S_ST+15}, s60")
        e("s_lshl_b32 s60, s2, 3")
        e(f"s_add_u32 s60, s60, s{S_WAVE}")
        e("s_lshl_b32 s60, s60, 6")
        e("v_mov_b32 v0, s60")
        e("s_mov_b64 exec, 1")
        for k in range(16):
            e(f"v_mov_b32 v1, s{S_ST+k}")
            e(f"global_store_dword v0, v1, s[98:99] offset:{4*k}")
            e(f"global_store_dword v0, v1, s[98:99] offset:{256+4*k}")
        e("L_end2:")
    e("s_endpgm")
    lines = e.text().split("\n")
    if c["hop"]:
        lines = add_hops(lines, c["hop"])
    keep, inloop = [], False
    for l in lines:
        if l.startswith("L_loop"): inloop = True
        if l.startswith("L_join"): inloop = False
        drop = inloop and ((c["no_store"] and "buffer_store" in l) or (c["no_dma"] and "buffer_load" in l))
        keep.append("  s_nop 0" if drop else l)
    foot = FOOTER.format(name=NAME).replace("next_free_vgpr 256", "next_free_vgpr 512")
    return HEADER.format(name=NAME, lds=LDS_BYTES) + "\n".join(keep) + foot, e.stats


if __name__ == "__main__":
    out = sys.argv[1]
    kw = {}
    for a in sys.argv[2:]:
        k, v = a.split("=")
        kw[k] = int(v)
    txt, stats = generate(**kw)
    open(out, "w").write(txt)
    print(out, len(txt), stats)
```
